```python
import torch

def _softmax(x, axis=-1):
    return torch.softmax(x, dim=axis)
def _gelu(x):
    return torch.nn.functional.gelu(x, approximate="tanh")
def _silu(x):
    return torch.nn.functional.silu(x)
def _sigmoid(x):
    return torch.sigmoid(x)
def _layernorm(x, axis=-1, eps=1e-5):
    m = x.mean(dim=axis, keepdim=True)
    v = x.var(dim=axis, keepdim=True, unbiased=False)
    return (x - m) / torch.sqrt(v + eps)
def _scatter_add(tgt, idx, src, axis=0):
    return tgt.clone().index_add_(axis, idx, src)
def _segment_sum(src, seg, n):
    out = torch.zeros((n,) + src.shape[1:], dtype=src.dtype)
    return out.index_add_(0, seg, src)
def _pad(x, pw):
    flat = tuple(v for pair in reversed(pw) for v in pair)
    return torch.nn.functional.pad(x, flat)

kernel_name = 'parallel_sum__sliding_block_cached__swiglu_ffn__decode'

def setup_inputs():

    _w = (lambda a: (lambda t: t.to(torch.bfloat16) if t.is_floating_point() else t)(torch.as_tensor(a)))
    def _A_setup():
        B, Sq, D = 4, 1, 512
        Hq, Hkv, Sk, Dh = 32, 8, 16384, 128
        assert Hq % Hkv == 0, (Hq, Hkv)
        return {
            "x": _w((lambda *s: torch.randn(*s, dtype=torch.bfloat16) * 0.05)(B, Sq, D)),
            "k_cache": _w((lambda *s: torch.randn(*s, dtype=torch.bfloat16) * 3.2)(B, Hkv, Sk, Dh)),
            "v_cache": _w((lambda *s: torch.randn(*s, dtype=torch.bfloat16) * 1.6)(B, Hkv, Sk, Dh)),
            "wq": _w((lambda *s: torch.randn(*s, dtype=torch.bfloat16) * 3.2)(D, Hq * Dh) * (D ** -0.5)),
            "wo": _w((lambda *s: torch.randn(*s, dtype=torch.bfloat16) * 1.6)(Hq * Dh, D) * ((Hq * Dh) ** -0.5)),
        }
    _A_in = _A_setup()

    def _B_setup():
        B, S, D, F = 4, 1, 512, 1792
        return {
            "x": _w((lambda *s: torch.randn(*s, dtype=torch.bfloat16) * 0.05)(B, S, D)),
            "w_gate": _w((lambda *s: torch.randn(*s, dtype=torch.bfloat16) * 0.05)(D, F)),
            "w_up": _w((lambda *s: torch.randn(*s, dtype=torch.bfloat16) * 0.05)(D, F)),
            "w_down": _w((lambda *s: torch.randn(*s, dtype=torch.bfloat16) * 0.05)(F, D)),
        }
    _B_in = _B_setup()

    return {
        "A_x": _A_in["x"],
        "A_k_cache": _A_in["k_cache"],
        "A_v_cache": _A_in["v_cache"],
        "A_wq": _A_in["wq"],
        "A_wo": _A_in["wo"],
        "B_x": _B_in["x"],
        "B_w_gate": _B_in["w_gate"],
        "B_w_up": _B_in["w_up"],
        "B_w_down": _B_in["w_down"],
    }

def reference(A_x, A_k_cache, A_v_cache, A_wq, A_wo, B_x, B_w_gate, B_w_up, B_w_down):
    def _A_ref(x, k_cache, v_cache, wq, wo):
        B, Sq, D = x.shape
        Hq, Dh = 32, 128
        Hkv, Sk = k_cache.shape[1], k_cache.shape[2]
        W = min(4096, max(256, Sk // 4))
        rep = Hq // Hkv
        q = (lambda x, *d: x.permute(*d))((x @ wq).reshape(B, Sq, Hq, Dh), 0, 2, 1, 3)
        k = (lambda x, n, axis: torch.repeat_interleave(x, n, dim=axis))(k_cache[:, :, Sk - W:, :], rep, axis=1)
        v = (lambda x, n, axis: torch.repeat_interleave(x, n, dim=axis))(v_cache[:, :, Sk - W:, :], rep, axis=1)
        scores = torch.einsum("bhqd,bhkd->bhqk", q, k) * (Dh ** -0.5)
        p = _softmax(scores, axis=-1)
        o = torch.einsum("bhqk,bhkd->bhqd", p, v)
        return (lambda x, *d: x.permute(*d))(o, 0, 2, 1, 3).reshape(B, Sq, Hq * Dh) @ wo

    def _B_ref(x, w_gate, w_up, w_down):
        g = _silu(x @ w_gate)
        u = x @ w_up
        return (g * u) @ w_down

    x = A_x
    xn = _layernorm(x, axis=-1)
    return x + _A_ref(xn, A_k_cache, A_v_cache, A_wq, A_wo) + _B_ref(xn, B_w_gate, B_w_up, B_w_down)
```

```python
import sys, struct
NAME = "parallel_sum__sliding_block_cached__swiglu_ffn__decode"

def f2u(x): return struct.unpack("<I", struct.pack("<f", x))[0]

WS_EPOCH = 0
WS_QP = 0x1000
WS_GU = WS_QP + 512*1024
WS_ST = WS_GU + 448*1024
WS_OP = WS_ST + 16*1024
WS_H2 = WS_OP + 512*1024
WS_END = WS_H2 + 512*1024
L_K = 0
L_Q = 131072
L_Z = L_Q + 1280
L_F = L_Z + 256
L_ST = L_F + 64
L_MW = L_ST + 128
L_P = L_MW + 64
L_O = L_P + 4*1280
L_X = L_O + 8192
L_END = L_X + 4096
assert L_P % 16 == 0 and L_O % 16 == 0 and L_X % 16 == 0

SPIN_MAX = 1 << 16

def gen(stamps=False, opts=None):
    o = dict(kwait=12, rotx=0, sleep_q=1, sleep_o=1, sleep_h2=1, delay_h2=0, delay_o=0)
    if opts: o.update(opts)
    L = []
    def A(s): L.append("    " + s)
    def lab(s): L.append(s + ":")
    def C(s): L.append("    ; " + s)
    def nop(n): A(f"s_nop {n-1}")
    DPP = "row_mask:0xf bank_mask:0xf"
    sX, sK, sV, sWQ, sWO, sG, sU, sDN, sOUT, sDBG, sWS = 4, 6, 8, 10, 12, 16, 18, 20, 22, 24, 26
    sWID, sHKV, sR, sTAG = 28, 29, 30, 31
    rWS, rA, rB = 32, 36, 40
    sLO, sHI = 44, 45
    sSPIN = 46
    sH, sCB, sJB = 47, 48, 49
    t0, t1, t2, t3, t4, t5, t6, t7 = 50, 51, 52, 53, 54, 55, 56, 57
    mA, mB, mC = 58, 60, 62
    sST = 70
    nstamp = [0]
    def stamp(i):
        if stamps: A(f"s_memrealtime s[{sST+2*i}:{sST+2*i+1}]")
    def srd(r, p, nrec):
        A(f"s_mov_b32 s{r}, s{p}"); A(f"s_and_b32 s{r+1}, s{p+1}, 0xffff")
        A(f"s_mov_b32 s{r+2}, {nrec}"); A(f"s_mov_b32 s{r+3}, 0x20000")
    def R(a, n): return f"v[{a}:{a+n-1}]"
    def S4(r): return f"s[{r}:{r+3}]"
    vLANE, vSLAB, vN = 0, 2, 3
    def load_epoch():
        A(f"s_load_dword s{sTAG}, s[{sWS}:{sWS+1}], {WS_EPOCH}")
    def make_tag():
        A(f"s_mul_i32 s{sTAG}, s{sTAG}, 0x9E3779B1"); A(f"s_add_u32 s{sTAG}, s{sTAG}, 0x7F4A7C15")
    def xsum_slabs(v, tmp, op="v_add_f32"):
        A(f"v_mov_b32 v{tmp}, v{v}"); nop(2)
        A(f"v_permlane16_swap_b32 v{v}, v{tmp}"); nop(1)
        A(f"{op} v{v}, v{v}, v{tmp}")
        A(f"v_mov_b32 v{tmp}, v{v}"); nop(2)
        A(f"v_permlane32_swap_b32 v{v}, v{tmp}"); nop(1)
        A(f"{op} v{v}, v{v}, v{tmp}")
    def dpp_op(op, v, ctl):
        nop(2); A(f"{op}_dpp v{v}, v{v}, v{v} {ctl} {DPP}")
    def bf16r(v):
        A(f"v_cvt_pk_bf16_f32 v{v}, v{v}, v{v}"); A(f"v_and_b32 v{v}, 0xffff0000, v{v}")
    def lds_spin(name, vaddr, vtmp, mask):
        A(f"s_mov_b32 s{sSPIN}, 0")
        lab(f"L_spin_{name}")
        A(f"ds_read_b32 v{vtmp}, v{vaddr}")
        A("s_waitcnt lgkmcnt(0)")
        A(f"v_cmp_ne_u32 vcc, 0, v{vtmp}")
        A(f"s_and_b32 s{t7}, vcc_lo, {mask}")
        A(f"s_cmp_eq_u32 s{t7}, {mask}")
        A(f"s_cbranch_scc1 L_spin_{name}_done")
        A("s_sleep 2")
        A(f"s_add_u32 s{sSPIN}, s{sSPIN}, 1")
        A(f"s_cmp_lt_u32 s{sSPIN}, {SPIN_MAX*4}")
        A(f"s_cbranch_scc1 L_spin_{name}")
        lab(f"L_spin_{name}_done")

    L.append(f"; @launch grid=(256,1,1) block=(512,1,1) lds={L_END}")
    L.append('.amdgcn_target "amdgcn-amd-amdhsa--gfx950"')
    L.append(".text"); L.append(f".globl {NAME}_kernel"); L.append(".p2align 8"); L.append(f".type {NAME}_kernel,@function")
    lab(f"{NAME}_kernel")
    A("s_cmp_ge_u32 s2, 256"); A("s_cbranch_scc1 L_end")
    A("s_load_dwordx16 s[4:19], s[0:1], 0")
    A("s_load_dwordx8 s[20:27], s[0:1], 64")
    if stamps:
        for i in range(1, 12): A(f"s_mov_b64 s[{sST+2*i}:{sST+2*i+1}], 0")
    stamp(0)
    A("v_lshrrev_b32 v1, 6, v0")
    A("v_and_b32 v0, 63, v0")
    A(f"s_and_b32 s{sHKV}, s2, 7")
    A(f"v_readfirstlane_b32 s{sWID}, v1")
    A(f"s_lshr_b32 s{sR}, s2, 3")
    A(f"v_lshrrev_b32 v{vSLAB}, 4, v0")
    A(f"v_and_b32 v{vN}, 15, v0")
    A(f"s_mov_b32 s{sLO}, 0x05040100"); A(f"s_mov_b32 s{sHI}, 0x07060302")
    A(f"s_cmp_ge_u32 s{sWID}, 4"); A("s_cbranch_scc1 L_att")
    A(f"s_cmp_ge_u32 s{sWID}, 2"); A("s_cbranch_scc1 L_aux")

    C("---- service waves 0,1: projection tile (wave0: wq, wave1: gate/up)")
    sSTR, sTOFF, sPOFF, sPPI, sKQ = t0, t1, t2, t3, t4
    A(f"s_cmp_eq_u32 s{sWID}, 0"); A("s_cbranch_scc1 L_pq")
    A(f"s_cmp_ge_u32 s{sR}, 28"); A("s_cbranch_scc1 L_aux")
    A(f"s_movk_i32 s{sSTR}, 3584"); A(f"s_lshr_b32 s{sKQ}, s{sHKV}, 1")
    A(f"s_mul_i32 s{sTOFF}, s{sKQ}, {128*3584}"); A(f"s_lshl_b32 s{t5}, s{sR}, 7"); A(f"s_add_u32 s{sTOFF}, s{sTOFF}, s{t5}")
    A(f"s_and_b32 s{t6}, s{sHKV}, 1"); A(f"s_lshl_b32 s{t5}, s{t6}, 2"); A(f"s_add_u32 s{t5}, s{t5}, s{sKQ}")
    A(f"s_mul_i32 s{sPOFF}, s{t5}, {4*14336}"); A(f"s_lshl_b32 s{t5}, s{sR}, 9"); A(f"s_add_u32 s{sPOFF}, s{sPOFF}, s{t5}")
    A(f"s_add_u32 s{sPOFF}, s{sPOFF}, {WS_GU}"); A(f"s_movk_i32 s{sPPI}, 14336")
    A(f"s_mov_b32 s{rA+2}, {512*3584}")
    A("s_waitcnt lgkmcnt(0)")
    A(f"s_cmp_eq_u32 s{t6}, 0")
    A(f"s_cselect_b32 s{rA}, s{sG}, s{sU}"); A(f"s_cselect_b32 s{rA+1}, s{sG+1}, s{sU+1}")
    A("s_branch L_proj")
    lab("L_pq")
    A(f"s_movk_i32 s{sSTR}, 8192"); A(f"s_and_b32 s{sKQ}, s{sR}, 3")
    A(f"s_lshr_b32 s{t5}, s{sR}, 2"); A(f"s_lshl_b32 s{t6}, s{sHKV}, 3"); A(f"s_add_u32 s{t5}, s{t5}, s{t6}")
    A(f"s_lshl_b32 s{sTOFF}, s{sKQ}, 20"); A(f"s_lshl_b32 s{t6}, s{t5}, 7"); A(f"s_add_u32 s{sTOFF}, s{sTOFF}, s{t6}")
    A(f"s_lshl_b32 s{sPOFF}, s{sKQ}, 17"); A(f"s_lshl_b32 s{t6}, s{t5}, 9"); A(f"s_add_u32 s{sPOFF}, s{sPOFF}, s{t6}")
    A(f"s_add_u32 s{sPOFF}, s{sPOFF}, {WS_QP}"); A(f"s_mov_b32 s{sPPI}, 32768")
    A(f"s_mov_b32 s{rA+2}, 0x400000")
    A("s_waitcnt lgkmcnt(0)")
    A(f"s_mov_b32 s{rA}, s{sWQ}"); A(f"s_mov_b32 s{rA+1}, s{sWQ+1}")
    lab("L_proj")
    A(f"s_and_b32 s{rA+1}, s{rA+1}, 0xffff"); A(f"s_mov_b32 s{rA+3}, 0x20000")
    srd(rB, sX, 4096)
    XS, XA, T, F = 8, 24, 40, 104
    vA0, vA1, vA2 = 4, 5, 6
    A(f"v_lshrrev_b32 v{vA2}, 2, v{vN}"); A(f"v_lshlrev_b32 v{vA2}, 10, v{vA2}")
    A(f"v_and_b32 v{vA0}, 3, v{vN}"); A(f"v_lshl_add_u32 v{vA0}, v{vSLAB}, 2, v{vA0}"); A(f"v_lshl_add_u32 v{vA0}, v{vA0}, 6, v{vA2}")
    A(f"v_lshl_add_u32 v{vA1}, v{vSLAB}, 4, v{vA2}")
    A(f"s_lshl_b32 s{t5}, s{sKQ}, 8")
    for j in range(4): A(f"buffer_load_dwordx4 {R(XS+4*j,4)}, v{vA0}, {S4(rB)}, 0 offen offset:{16*j}")
    for j in range(4): A(f"buffer_load_dwordx4 {R(XA+4*j,4)}, v{vA1}, {S4(rB)}, s{t5} offen offset:{64*j}")
    A(f"s_lshl_b32 s{t5}, s{sSTR}, 3")
    A(f"v_mul_lo_u32 v{vA2}, v{vSLAB}, s{t5}"); A(f"v_lshl_add_u32 v{vA2}, v{vN}, 3, v{vA2}")
    A(f"s_mul_i32 s{t6}, s{sSTR}, 25")
    for st in range(4):
        for j in range(8):
            i = 8*st + j
            A(f"buffer_load_dwordx2 {R(T+2*i,2)}, v{vA2}, {S4(rA)}, s{sTOFF} offen nt")
            if i < 31: A(f"s_add_u32 s{sTOFF}, s{sTOFF}, s{sSTR if j < 7 else t6}")
    load_epoch()
    A("s_barrier")
    C("layernorm")
    A("s_waitcnt vmcnt(36)")
    for i in range(16):
        A(f"v_lshlrev_b32 v{F+2*i}, 16, v{XS+i}"); A(f"v_and_b32 v{F+2*i+1}, 0xffff0000, v{XS+i}")
    AC = XS
    A(f"v_pk_add_f32 {R(AC,2)}, {R(F,2)}, {R(F+2,2)}"); A(f"v_pk_add_f32 {R(AC+2,2)}, {R(F+4,2)}, {R(F+6,2)}")
    for i in range(4, 16, 2):
        A(f"v_pk_add_f32 {R(AC,2)}, {R(AC,2)}, {R(F+2*i,2)}"); A(f"v_pk_add_f32 {R(AC+2,2)}, {R(AC+2,2)}, {R(F+2*i+2,2)}")
    A(f"v_pk_add_f32 {R(AC,2)}, {R(AC,2)}, {R(AC+2,2)}")
    MU, TM = XS+4, XS+6
    A(f"v_add_f32 v{MU}, v{AC}, v{AC+1}")
    dpp_op("v_add_f32", MU, "quad_perm:[1,0,3,2]"); dpp_op("v_add_f32", MU, "quad_perm:[2,3,0,1]")
    xsum_slabs(MU, TM)
    A(f"v_mul_f32 v{MU}, {hex(f2u(1/512))}, v{MU}"); A(f"v_mov_b32 v{MU+1}, v{MU}")
    for i in range(16): A(f"v_pk_add_f32 {R(F+2*i,2)}, {R(F+2*i,2)}, {R(MU,2)} neg_lo:[0,1] neg_hi:[0,1]")
    A(f"v_pk_mul_f32 {R(AC,2)}, {R(F,2)}, {R(F,2)}"); A(f"v_pk_mul_f32 {R(AC+2,2)}, {R(F+2,2)}, {R(F+2,2)}")
    for i in range(2, 16, 2):
        A(f"v_pk_fma_f32 {R(AC,2)}, {R(F+2*i,2)}, {R(F+2*i,2)}, {R(AC,2)}"); A(f"v_pk_fma_f32 {R(AC+2,2)}, {R(F+2*i+2,2)}, {R(F+2*i+2,2)}, {R(AC+2,2)}")
    A(f"v_pk_add_f32 {R(AC,2)}, {R(AC,2)}, {R(AC+2,2)}")
    VR = XS+8
    A(f"v_add_f32 v{VR}, v{AC}, v{AC+1}")
    dpp_op("v_add_f32", VR, "quad_perm:[1,0,3,2]"); dpp_op("v_add_f32", VR, "quad_perm:[2,3,0,1]")
    xsum_slabs(VR, TM)
    A(f"v_mul_f32 v{VR}, {hex(f2u(1/512))}, v{VR}")
    bf16r(MU); A(f"v_mov_b32 v{MU+1}, v{MU}")
    bf16r(VR)
    A(f"v_add_f32 v{VR}, {hex(f2u(1e-5))}, v{VR}"); bf16r(VR)
    A(f"v_sqrt_f32 v{VR}, v{VR}"); nop(1); bf16r(VR)
    RC = XS+10
    A(f"v_rcp_f32 v{RC}, v{VR}"); nop(1)
    A(f"v_fma_f32 v{TM}, -v{VR}, v{RC}, 1.0"); A(f"v_fma_f32 v{RC}, v{TM}, v{RC}, v{RC}"); A(f"v_mov_b32 v{RC+1}, v{RC}")
    A("s_waitcnt vmcnt(32)")
    for i in range(16):
        A(f"v_lshlrev_b32 v{F+2*i}, 16, v{XA+i}"); A(f"v_and_b32 v{F+2*i+1}, 0xffff0000, v{XA+i}")
    for i in range(16): A(f"v_pk_add_f32 {R(F+2*i,2)}, {R(F+2*i,2)}, {R(MU,2)} neg_lo:[0,1] neg_hi:[0,1]")
    for i in range(16): A(f"v_cvt_pk_bf16_f32 v{XA+i}, v{F+2*i}, v{F+2*i+1}")
    for i in range(16):
        A(f"v_lshlrev_b32 v{F+2*i}, 16, v{XA+i}"); A(f"v_and_b32 v{F+2*i+1}, 0xffff0000, v{XA+i}")
    for i in range(16): A(f"v_pk_mul_f32 {R(F+2*i,2)}, {R(F+2*i,2)}, {R(RC,2)}")
    for i in range(16): A(f"v_cvt_pk_bf16_f32 v{XA+i}, v{F+2*i}, v{F+2*i+1}")
    C("projection MFMAs")
    D = XS
    BB = F
    for st in range(4):
        A(f"s_waitcnt vmcnt({24-8*st})")
        bb = BB + 16*(st & 1)
        for e in range(4):
            for i in range(4):
                A(f"v_perm_b32 v{bb+4*e+i}, v{T+2*(8*st+2*i+1)+(e>>1)}, v{T+2*(8*st+2*i)+(e>>1)}, s{sHI if e&1 else sLO}")
        nop(2)
        for e in range(4):
            A(f"v_mfma_f32_16x16x32_bf16 {R(D+4*e,4)}, {R(XA+4*st,4)}, {R(bb+4*e,4)}, {'0' if st==0 else R(D+4*e,4)}")
    srd(rWS, sWS, WS_END)
    A("s_waitcnt lgkmcnt(0)")
    make_tag()
    A(f"v_mul_lo_u32 v{vA0}, v{vSLAB}, s{sPPI}"); A(f"v_lshl_add_u32 v{vA0}, v{vN}, 5, v{vA0}")
    nop(4)
    A(f"v_mov_b32 v{D+1}, s{sTAG}"); A(f"v_mov_b32 v{D+2}, v{D+4}"); A(f"v_mov_b32 v{D+3}, s{sTAG}")
    A(f"v_mov_b32 v{D+9}, s{sTAG}"); A(f"v_mov_b32 v{D+10}, v{D+12}"); A(f"v_mov_b32 v{D+11}, s{sTAG}")
    A(f"buffer_store_dwordx4 {R(D,4)}, v{vA0}, {S4(rWS)}, s{sPOFF} offen sc1")
    A(f"buffer_store_dwordx4 {R(D+8,4)}, v{vA0}, {S4(rWS)}, s{sPOFF} offen offset:16 sc1")
    stamp(1)
    A(f"s_cmp_eq_u32 s{sWID}, 0"); A("s_cbranch_scc0 L_svc")
    A("s_waitcnt vmcnt(0)")
    A(f"v_mov_b32 v{vA0}, {L_F + 8*4}"); A(f"v_mov_b32 v{vA1}, 1")
    A(f"ds_write_b32 v{vA0}, v{vA1}")
    A("s_branch L_svc")

    lab("L_aux")
    C("---- waves 2,3 (and idle wave 1): LDS init, code prefetch, TLB warm")
    A(f"v_lshlrev_b32 v4, 2, v0"); A(f"v_add_u32 v4, {L_Z}, v4"); A("v_mov_b32 v5, 0")
    A("ds_write_b32 v4, v5"); A("ds_write_b32 v4, v5 offset:64")
    A(f"s_getpc_b64 s[{t0}:{t1}]")
    lab("L_pc")
    A(f"s_sub_u32 s{t0}, s{t0}, L_pc-{NAME}_kernel"); A(f"s_subb_u32 s{t1}, s{t1}, 0")
    A(f"s_and_b32 s{t2}, s{sWID}, 1"); A(f"s_lshl_b32 s{t2}, s{t2}, 12")
    A(f"v_lshl_add_u32 v6, v0, 6, s{t2}")
    A(f"v_min_u32 v6, L_codeend-{NAME}_kernel-4, v6")
    A(f"global_load_dword v7, v6, s[{t0}:{t1}]")
    A(f"v_add_u32 v6, 8192, v6"); A(f"v_min_u32 v6, L_codeend-{NAME}_kernel-4, v6")
    A(f"global_load_dword v7, v6, s[{t0}:{t1}]")
    A("s_waitcnt lgkmcnt(0)")
    load_epoch()
    srd(rWS, sWS, WS_END)
    A("s_barrier")
    A("s_waitcnt lgkmcnt(0)")
    make_tag()

    lab("L_svc")
    C("---- all service waves")
    vFL, vT0, vT1, vT2 = 4, 5, 6, 7
    A(f"s_lshr_b32 s{t0}, s{sR}, 3")
    A(f"s_lshl_b32 s{sH}, s{sHKV}, 2"); A(f"s_add_u32 s{sH}, s{sH}, s{t0}")
    A(f"s_and_b32 s{sCB}, s{sR}, 7")
    A(f"s_lshl_b32 s{sJB}, s{t0}, 3"); A(f"s_add_u32 s{sJB}, s{sJB}, s{sHKV}"); A(f"s_sub_u32 s{sJB}, s{sJB}, 4")
    vXR = 250
    srd(rB, sX, 4096)
    A(f"v_and_b32 v{vT0}, 3, v0"); A(f"v_lshlrev_b32 v{vXR+1}, 2, v{vT0}"); A(f"s_lshl_b32 s{t1}, s2, 4")
    A(f"buffer_load_dword v{vXR}, v{vXR+1}, {S4(rB)}, s{t1} offen")
    srd(rB, sOUT, 4096)
    A(f"buffer_load_dword v{vXR+2}, v{vXR+1}, {S4(rB)}, s{t1} offen")
    A(f"v_lshlrev_b32 v{vFL}, 2, v{vN}"); A(f"v_add_u32 v{vFL}, {L_F}, v{vFL}")
    lds_spin("go", vFL, vT0, "0x100")
    stamp(2)
    C("q gather: wave w <-> head w; lane l <-> d pair")
    QG = 8
    A(f"v_lshlrev_b32 v{vT1}, 4, v0")
    A(f"s_lshl_b32 s{t1}, s{t0}, 15"); A(f"s_lshl_b32 s{t2}, s{sHKV}, 12"); A(f"s_add_u32 s{t1}, s{t1}, s{t2}")
    A(f"s_lshl_b32 s{t2}, s{sWID}, 10"); A(f"s_add_u32 s{t1}, s{t1}, s{t2}"); A(f"s_add_u32 s{t1}, s{t1}, {WS_QP}")
    A(f"s_add_u32 s{t2}, s{t1}, {1<<17}"); A(f"s_add_u32 s{t3}, s{t1}, {2<<17}"); A(f"s_add_u32 s{t4}, s{t1}, {3<<17}")
    A(f"s_mov_b32 s{sSPIN}, 0")
    lab("L_qpoll")
    for k in range(4): A(f"buffer_load_dwordx4 {R(QG+4*k,4)}, v{vT1}, {S4(rWS)}, s{t1+k} offen sc1")
    A("s_waitcnt vmcnt(0)")
    for k in range(4): A(f"v_bitop3_b32 v{QG+4*k+1}, v{QG+4*k+1}, v{QG+4*k+3}, s{sTAG} bitop3:0x7e")
    A(f"v_or3_b32 v{QG+1}, v{QG+1}, v{QG+5}, v{QG+9}"); A(f"v_or_b32 v{QG+1}, v{QG+1}, v{QG+13}")
    A(f"v_cmp_ne_u32 vcc, 0, v{QG+1}")
    A("s_cbranch_vccz L_qok")
    A(f"s_sleep {o['sleep_q']}")
    A(f"s_add_u32 s{sSPIN}, s{sSPIN}, 1"); A(f"s_cmp_lt_u32 s{sSPIN}, {SPIN_MAX}"); A("s_cbranch_scc1 L_qpoll")
    lab("L_qok")
    A(f"v_add_f32 v{QG}, v{QG}, v{QG+4}"); A(f"v_add_f32 v{QG+2}, v{QG+2}, v{QG+6}")
    A(f"v_add_f32 v{QG+8}, v{QG+8}, v{QG+12}"); A(f"v_add_f32 v{QG+10}, v{QG+10}, v{QG+14}")
    A(f"v_add_f32 v{QG}, v{QG}, v{QG+8}"); A(f"v_add_f32 v{QG+2}, v{QG+2}, v{QG+10}")
    A(f"v_cvt_pk_bf16_f32 v{QG}, v{QG}, v{QG+2}")
    A(f"s_mul_i32 s{t1}, s{sWID}, 320"); A(f"s_add_u32 s{t1}, s{t1}, {L_Q}")
    A(f"v_lshl_add_u32 v{vT1}, v0, 2, s{t1}")
    A(f"ds_write_b32 v{vT1}, v{QG}")
    A(f"s_lshl_b32 s{t1}, s{sWID}, 2"); A(f"s_add_u32 s{t1}, s{t1}, {L_F+16}")
    A(f"v_mov_b32 v{vT1}, s{t1}"); A(f"v_mov_b32 v{vT2}, 1")
    A("s_waitcnt lgkmcnt(0)")
    A(f"ds_write_b32 v{vT1}, v{vT2}")
    stamp(3)
    C("issue g/u gather: lane (slab, b, kq): f = 64*jb + 16*w + 4*slab + (0..3)")
    GU = 200
    vGA = 216
    A(f"v_and_b32 v{vT0}, 3, v{vN}"); A(f"v_lshrrev_b32 v{vT1}, 2, v{vN}")
    A(f"v_lshl_add_u32 v{vT0}, v{vT0}, 2, v{vT1}")
    A(f"s_movk_i32 s{t1}, 14336"); A(f"v_mul_lo_u32 v{vT0}, v{vT0}, s{t1}")
    A(f"v_lshl_add_u32 v{vGA}, v{vSLAB}, 5, v{vT0}")
    sGO, sUO = 64, 65
    A(f"s_max_i32 s{t1}, s{sJB}, 0"); A(f"s_lshl_b32 s{sGO}, s{t1}, 9"); A(f"s_lshl_b32 s{t1}, s{sWID}, 7"); A(f"s_add_u32 s{sGO}, s{sGO}, s{t1}")
    A(f"s_add_u32 s{sGO}, s{sGO}, {WS_GU}"); A(f"s_add_u32 s{sUO}, s{sGO}, {16*14336}")
    def gu_loads():
        A(f"buffer_load_dwordx4 {R(GU,4)}, v{vGA}, {S4(rWS)}, s{sGO} offen sc1")
        A(f"buffer_load_dwordx4 {R(GU+4,4)}, v{vGA}, {S4(rWS)}, s{sGO} offen offset:16 sc1")
        A(f"buffer_load_dwordx4 {R(GU+8,4)}, v{vGA}, {S4(rWS)}, s{sUO} offen sc1")
        A(f"buffer_load_dwordx4 {R(GU+12,4)}, v{vGA}, {S4(rWS)}, s{sUO} offen offset:16 sc1")
    gu_loads()
    C("wait K_w landed and all q heads")
    A(f"s_lshl_b32 s{t1}, 1, s{sWID}"); A(f"s_or_b32 s{t1}, s{t1}, 0xf0")
    lds_spin("kq", vFL, vT0, f"s{t1}")
    stamp(4)
    QM = 8
    KF = 72
    vQA = 140
    A(f"v_and_b32 v{vT0}, 3, v{vN}"); A(f"v_mul_u32_u24 v{vT0}, 320, v{vT0}"); A(f"v_lshl_add_u32 v{vT0}, v{vSLAB}, 4, v{vT0}")
    A(f"v_add_u32 v{vT1}, {L_Q}, v{vT0}")
    A(f"v_lshrrev_b32 v{vT2}, 2, v{vN}")
    A(f"v_mov_b32 v{vQA+4}, {L_Z}")
    for u in range(4):
        A(f"v_cmp_eq_u32 vcc, {u}, v{vT2}"); nop(2)
        A(f"v_cndmask_b32 v{vQA+u}, v{vQA+4}, v{vT1}, vcc")
    for u in range(4):
        for c in range(4): A(f"ds_read_b128 {R(QM+16*u+4*c,4)}, v{vQA+u} offset:{64*c}")
    vKA = 146
    A(f"v_and_b32 v{vT1}, 3, v{vN}"); A(f"v_lshl_add_u32 v{vT1}, v{vT1}, 2, v{vT2}"); A(f"v_lshlrev_b32 v{vT1}, 8, v{vT1}")
    A(f"s_lshl_b32 s{t1}, s{sWID}, 15"); A(f"v_add_u32 v{vT1}, s{t1}, v{vT1}")
    A(f"v_xor_b32 v{vT2}, v{vSLAB}, v{vN}")
    for c in range(4):
        A(f"v_xor_b32 v{vKA+c}, {4*c}, v{vT2}"); A(f"v_lshl_add_u32 v{vKA+c}, v{vKA+c}, 4, v{vT1}")
    SD = 152
    def kread(i):
        gi, c = i >> 2, i & 3
        A(f"ds_read_b128 {R(KF+4*(i&15),4)}, v{vKA+c} offset:{gi*4096}")
    A("s_waitcnt lgkmcnt(0)")
    for i in range(12): kread(i)
    for i in range(32):
        gi, c = i >> 2, i & 3
        u, jh = gi >> 1, gi & 1
        outstanding = min(32, i + 12) - i - 1
        A(f"s_waitcnt lgkmcnt({outstanding})")
        first = (u == 0 and c == 0)
        A(f"v_mfma_f32_16x16x32_bf16 {R(SD+4*jh,4)}, {R(KF+4*(i&15),4)}, {R(QM+16*u+4*c,4)}, {'0' if first else R(SD+4*jh,4)}")
        if i + 12 < 32: kread(i + 12)
    nop(8)
    C("scores: round to bf16, scale, round; softmax numerator")
    SP = 160
    A(f"s_mov_b32 s{t1}, {hex(f2u(128**-0.5))}"); A(f"s_mov_b32 s{t2}, {hex(f2u(1.4426950408889634))}")
    for i in range(4): A(f"v_cvt_pk_bf16_f32 v{SP+i}, v{SD+2*i}, v{SD+2*i+1}")
    for i in range(4):
        A(f"v_lshlrev_b32 v{SD+2*i}, 16, v{SP+i}"); A(f"v_and_b32 v{SD+2*i+1}, 0xffff0000, v{SP+i}")
    for i in range(8): A(f"v_mul_f32 v{SD+i}, s{t1}, v{SD+i}")
    for i in range(4): A(f"v_cvt_pk_bf16_f32 v{SP+i}, v{SD+2*i}, v{SD+2*i+1}")
    for i in range(4):
        A(f"v_lshlrev_b32 v{SD+2*i}, 16, v{SP+i}"); A(f"v_and_b32 v{SD+2*i+1}, 0xffff0000, v{SP+i}")
    MX, SM = 164, 165
    A(f"v_max3_f32 v{MX}, v{SD}, v{SD+1}, v{SD+2}"); A(f"v_max3_f32 v{SM}, v{SD+3}, v{SD+4}, v{SD+5}")
    A(f"v_max3_f32 v{MX}, v{MX}, v{SD+6}, v{SD+7}"); A(f"v_max_f32 v{MX}, v{MX}, v{SM}")
    dpp_op("v_max_f32", MX, "row_ror:4"); dpp_op("v_max_f32", MX, "row_ror:8")
    xsum_slabs(MX, vT0, "v_max_f32")
    for i in range(8): A(f"v_sub_f32 v{SD+i}, v{SD+i}, v{MX}")
    for i in range(8): A(f"v_mul_f32 v{SD+i}, s{t2}, v{SD+i}")
    for i in range(8): A(f"v_exp_f32 v{SD+i}, v{SD+i}")
    nop(1)
    for i in range(4): A(f"v_cvt_pk_bf16_f32 v{SP+i}, v{SD+2*i}, v{SD+2*i+1}")
    A(f"v_add_f32 v{SM}, v{SD}, v{SD+1}"); A(f"v_add_f32 v{vT0}, v{SD+2}, v{SD+3}")
    A(f"v_add_f32 v{vT1}, v{SD+4}, v{SD+5}"); A(f"v_add_f32 v{vT2}, v{SD+6}, v{SD+7}")
    A(f"v_add_f32 v{SM}, v{SM}, v{vT0}"); A(f"v_add_f32 v{vT1}, v{vT1}, v{vT2}"); A(f"v_add_f32 v{SM}, v{SM}, v{vT1}")
    A(f"v_and_b32 v{vT0}, 3, v{vN}"); A(f"v_mul_u32_u24 v{vT1}, 320, v{vT0}"); A(f"v_lshl_add_u32 v{vT1}, v{vSLAB}, 4, v{vT1}")
    A(f"v_and_b32 v{vT2}, 12, v{vN}"); A(f"v_lshl_add_u32 v{vT1}, v{vT2}, 4, v{vT1}")
    A(f"s_mul_i32 s{t1}, s{sWID}, 1280"); A(f"s_add_u32 s{t1}, s{t1}, {L_P}"); A(f"v_add_u32 v{vT1}, s{t1}, v{vT1}")
    A(f"ds_write_b128 v{vT1}, {R(SP,4)}")
    dpp_op("v_add_f32", SM, "row_ror:4"); dpp_op("v_add_f32", SM, "row_ror:8")
    xsum_slabs(SM, vT2)
    A(f"s_lshl_b32 s{t1}, s{sWID}, 2"); A(f"s_add_u32 s{t1}, s{t1}, {L_ST}"); A(f"v_lshl_add_u32 v{vT1}, v{vT0}, 4, s{t1}")
    A(f"s_lshl_b32 s{t1}, s{sWID}, 4"); A(f"s_add_u32 s{t1}, s{t1}, {L_MW}"); A(f"v_lshl_add_u32 v{vT2}, v{vT0}, 2, s{t1}")
    A(f"ds_write_b32 v{vT1}, v{MX}"); A(f"ds_write_b32 v{vT1}, v{SM} offset:64"); A(f"ds_write_b32 v{vT2}, v{MX}")
    stamp(5)
    C("g/u check + FFN hidden activations")
    AH = 218
    A(f"v_mov_b32 v{AH}, 0"); A(f"v_mov_b32 v{AH+1}, 0")
    A(f"s_cmp_lt_i32 s{sJB}, 0"); A("s_cbranch_scc1 L_noffn")
    A(f"s_mov_b32 s{sSPIN}, 0")
    lab("L_gupoll")
    A("s_waitcnt vmcnt(0)")
    for k in range(4): A(f"v_bitop3_b32 v{GU+4*k+1}, v{GU+4*k+1}, v{GU+4*k+3}, s{sTAG} bitop3:0x7e")
    A(f"v_or3_b32 v{GU+1}, v{GU+1}, v{GU+5}, v{GU+9}"); A(f"v_or_b32 v{GU+1}, v{GU+1}, v{GU+13}")
    A(f"v_cmp_ne_u32 vcc, 0, v{GU+1}")
    A("s_cbranch_vccz L_guok")
    A(f"s_add_u32 s{sSPIN}, s{sSPIN}, 1"); A(f"s_cmp_lt_u32 s{sSPIN}, {SPIN_MAX}"); A("s_cbranch_scc0 L_guok")
    gu_loads()
    A("s_branch L_gupoll")
    lab("L_guok")
    vals = [GU + 2*i for i in range(8)]
    for ctl in ("quad_perm:[1,0,3,2]", "quad_perm:[2,3,0,1]"):
        for v in vals: A(f"v_add_f32_dpp v{v}, v{v}, v{v} {ctl} {DPP}")
    for v in vals: A(f"v_cvt_pk_bf16_f32 v{v}, v{v}, v{v}")
    for v in vals: A(f"v_and_b32 v{v}, 0xffff0000, v{v}")
    A(f"s_mov_b32 s{t2}, {hex(f2u(-1.4426950408889634))}")
    for i in range(4): A(f"v_mul_f32 v{vals[i]+1}, s{t2}, v{vals[i]}")
    for i in range(4): A(f"v_exp_f32 v{vals[i]+1}, v{vals[i]+1}")
    nop(1)
    for i in range(4): A(f"v_add_f32 v{vals[i]+1}, 1.0, v{vals[i]+1}")
    for i in range(4): A(f"v_rcp_f32 v{vals[i]+1}, v{vals[i]+1}")
    nop(1)
    for i in range(4): A(f"v_mul_f32 v{vals[i]}, v{vals[i]}, v{vals[i]+1}")
    for i in range(4): A(f"v_cvt_pk_bf16_f32 v{vals[i]}, v{vals[i]}, v{vals[i]}")
    for i in range(4): A(f"v_and_b32 v{vals[i]}, 0xffff0000, v{vals[i]}")
    for i in range(4): A(f"v_mul_f32 v{vals[i]}, v{vals[i]}, v{vals[4+i]}")
    A(f"v_cvt_pk_bf16_f32 v{AH}, v{vals[0]}, v{vals[1]}"); A(f"v_cvt_pk_bf16_f32 v{AH+1}, v{vals[2]}, v{vals[3]}")
    lab("L_noffn")
    C("precompute tail addresses")
    vWA, vDA, vSA, vOA, vXW, vXR2, vHA = 220, 221, 222, 223, 224, 225, 226
    sWOo, sWOo2, sDNo, sSTo, sOPo, sOPo2, sH2o, sRo = 50, 51, 52, 53, 54, 55, 56, 66
    A(f"v_lshlrev_b32 v{vT0}, 3, v{vN}")
    A(f"v_lshl_add_u32 v{vWA}, v{vSLAB}, 13, v{vT0}"); A(f"v_lshl_add_u32 v{vDA}, v{vSLAB}, 12, v{vT0}")
    A(f"s_lshl_b32 s{sWOo}, s{sH}, 17"); A(f"s_lshl_b32 s{t7}, s{sWID}, 15"); A(f"s_add_u32 s{sWOo}, s{sWOo}, s{t7}")
    A(f"s_lshl_b32 s{t7}, s{sCB}, 7"); A(f"s_add_u32 s{sWOo}, s{sWOo}, s{t7}"); A(f"s_add_u32 s{sWOo2}, s{sWOo}, 4096")
    A(f"s_max_i32 s{sDNo}, s{sJB}, 0"); A(f"s_lshl_b32 s{sDNo}, s{sDNo}, 16"); A(f"s_add_u32 s{sDNo}, s{sDNo}, s{t7}")
    A(f"s_lshl_b32 s{t7}, s{sWID}, 14"); A(f"s_add_u32 s{sDNo}, s{sDNo}, s{t7}")
    srd(rA, sWO, 0x400000)
    A(f"s_mov_b32 s{rB}, s{sDN}"); A(f"s_and_b32 s{rB+1}, s{sDN+1}, 0xffff"); A(f"s_mov_b32 s{rB+3}, 0x20000")
    A(f"s_cmp_lt_i32 s{sJB}, 0"); A(f"s_cselect_b32 s{rB+2}, 0, {1792*1024}")
    A(f"v_and_b32 v{vT0}, 7, v{vN}"); A(f"v_lshlrev_b32 v{vT0}, 4, v{vT0}"); A(f"v_lshl_add_u32 v{vSA}, v{vSLAB}, 7, v{vT0}")
    A(f"s_lshl_b32 s{sSTo}, s{sH}, 9"); A(f"s_add_u32 s{sSTo}, s{sSTo}, {WS_ST}")
    A(f"v_lshrrev_b32 v{vT0}, 2, v{vN}"); A(f"v_and_b32 v{vT1}, 3, v{vN}"); A(f"v_lshl_add_u32 v{vT0}, v{vT0}, 3, v{vT1}")
    A(f"v_lshlrev_b32 v{vT0}, 9, v{vT0}"); A(f"v_lshl_add_u32 v{vOA}, v{vSLAB}, 5, v{vT0}")
    A(f"s_lshl_b32 s{sOPo}, s{sH}, 14"); A(f"s_lshl_b32 s{t7}, s{sWID}, 7"); A(f"s_add_u32 s{sOPo}, s{sOPo}, s{t7}"); A(f"s_add_u32 s{sOPo}, s{sOPo}, {WS_OP}")
    A(f"s_lshl_b32 s{t7}, s{sWID}, 10"); A(f"s_add_u32 s{t7}, s{t7}, {L_X}"); A(f"v_lshl_add_u32 v{vXW}, v0, 4, s{t7}")
    A(f"s_lshl_b32 s{t7}, s{sWID}, 9"); A(f"s_add_u32 s{t7}, s{t7}, {L_X}"); A(f"v_lshl_add_u32 v{vXR2}, v0, 3, s{t7}")
    A(f"v_lshrrev_b32 v{vT0}, 5, v0"); A(f"v_lshlrev_b32 v{vT0}, 17, v{vT0}")
    A(f"v_bfe_u32 v{vT1}, v0, 2, 3"); A(f"v_lshl_add_u32 v{vT0}, v{vT1}, 11, v{vT0}")
    A(f"v_and_b32 v{vT1}, 3, v0"); A(f"v_lshl_add_u32 v{vHA}, v{vT1}, 4, v{vT0}")
    A(f"s_lshl_b32 s{sH2o}, s{sWID}, 18"); A(f"s_lshl_b32 s{t7}, s{sCB}, 14"); A(f"s_add_u32 s{sH2o}, s{sH2o}, s{t7}")
    A(f"s_lshl_b32 s{t7}, s{sH}, 6"); A(f"s_add_u32 s{sH2o}, s{sH2o}, s{t7}"); A(f"s_add_u32 s{sH2o}, s{sH2o}, {WS_H2}")
    A(f"s_lshl_b32 s{sRo}, s2, 11"); A(f"s_add_u32 s{sRo}, s{sRo}, {WS_H2}")
    A("s_waitcnt vmcnt(0) lgkmcnt(0)")
    A("s_barrier")
    stamp(6)
    A(f"s_cmp_eq_u32 s{sWID}, 3"); A("s_cbranch_scc0 L_nostat")
    C("WG-level softmax stats publish")
    A(f"v_and_b32 v{vT0}, 3, v0"); A(f"v_lshlrev_b32 v{vT1}, 4, v{vT0}"); A(f"v_add_u32 v{vT1}, {L_ST}, v{vT1}")
    A(f"ds_read_b128 {R(8,4)}, v{vT1}"); A(f"ds_read_b128 {R(12,4)}, v{vT1} offset:64")
    A(f"s_mov_b32 s{t7}, {hex(f2u(1.4426950408889634))}")
    A("s_waitcnt lgkmcnt(0)")
    A("v_max3_f32 v16, v8, v9, v10"); A("v_max_f32 v16, v16, v11")
    for i in range(4): A(f"v_sub_f32 v{8+i}, v{8+i}, v16")
    for i in range(4): A(f"v_mul_f32 v{8+i}, s{t7}, v{8+i}")
    for i in range(4): A(f"v_exp_f32 v{8+i}, v{8+i}")
    A(f"v_mov_b32 v17, s{sTAG}"); A(f"v_mov_b32 v19, s{sTAG}")
    A("v_mul_f32 v18, v8, v12")
    for i in range(1, 4): A(f"v_fmac_f32 v18, v{8+i}, v{12+i}")
    A(f"v_lshlrev_b32 v{vT1}, 9, v{vT0}")
    A(f"s_lshl_b32 s{t7}, s{sHKV}, 11"); A(f"s_lshl_b32 s{sSPIN}, s{sR}, 4"); A(f"s_add_u32 s{t7}, s{t7}, s{sSPIN}"); A(f"s_add_u32 s{t7}, s{t7}, {WS_ST}")
    A("s_mov_b64 exec, 15")
    A(f"buffer_store_dwordx4 v[16:19], v{vT1}, {S4(rWS)}, s{t7} offen sc1")
    A("s_mov_b64 exec, -1")
    lab("L_nostat")
    C("tail weight tiles")
    TW, TD = 24, 40
    for j in range(8): A(f"buffer_load_dwordx2 {R(TW+2*j,2)}, v{vWA}, {S4(rA)}, s{sWOo if j<4 else sWOo2} offen offset:{1024*(j&3)} nt")
    for j in range(4): A(f"buffer_load_dwordx2 {R(TD+2*j,2)}, v{vDA}, {S4(rB)}, s{sDNo} offen offset:{1024*j} nt")
    A(f"s_add_u32 s{sOPo2}, s{sOPo}, 2048")
    A("s_barrier")
    stamp(7)
    SG, OG = 48, 52
    BW, BD, DF, DD, ACC, vW = 72, 88, 96, 112, 144, 148
    A(f"buffer_load_dwordx4 {R(SG,4)}, v{vSA}, {S4(rWS)}, s{sSTo} offen sc1")
    A("s_waitcnt vmcnt(1)")
    order = [0, 2, 1, 3]
    for e in range(4):
        for i in range(4):
            pr = order[i]
            A(f"v_perm_b32 v{BW+4*e+i}, v{TW+2*(2*pr+1)+(e>>1)}, v{TW+2*(2*pr)+(e>>1)}, s{sHI if e&1 else sLO}")
    for e in range(4):
        for i in range(2):
            A(f"v_perm_b32 v{BD+2*e+i}, v{TD+2*(2*i+1)+(e>>1)}, v{TD+2*(2*i)+(e>>1)}, s{sHI if e&1 else sLO}")
    def o_loads(p):
        A(f"buffer_load_dwordx4 {R(OG+8*p,4)}, v{vOA}, {S4(rWS)}, s{sOPo if p==0 else sOPo2} offen sc1")
        A(f"buffer_load_dwordx4 {R(OG+8*p+4,4)}, v{vOA}, {S4(rWS)}, s{sOPo if p==0 else sOPo2} offen offset:16 sc1")
    o_loads(0); o_loads(1)
    for e in range(4): A(f"v_mfma_f32_16x16x16_bf16 {R(DF+4*e,4)}, {R(AH,2)}, {R(BD+2*e,2)}, 0")
    A(f"s_mov_b32 s{sSPIN}, 0")
    A("s_waitcnt vmcnt(4)")
    lab("L_stpoll")
    A(f"v_bitop3_b32 v{SG+1}, v{SG+1}, v{SG+3}, s{sTAG} bitop3:0x7e")
    A(f"v_cmp_ne_u32 vcc, 0, v{SG+1}")
    A("s_cbranch_vccz L_stok")
    A(f"s_add_u32 s{sSPIN}, s{sSPIN}, 1"); A(f"s_cmp_lt_u32 s{sSPIN}, {SPIN_MAX}"); A("s_cbranch_scc0 L_stok")
    A(f"buffer_load_dwordx4 {R(SG,4)}, v{vSA}, {S4(rWS)}, s{sSTo} offen sc1")
    A("s_waitcnt vmcnt(0)")
    A("s_branch L_stpoll")
    lab("L_stok")
    A(f"s_mov_b32 s{t7}, {hex(f2u(1.4426950408889634))}")
    A(f"v_mov_b32 v{SG+1}, v{SG}")
    dpp_op("v_max_f32", SG+1, "quad_perm:[1,0,3,2]"); dpp_op("v_max_f32", SG+1, "quad_perm:[2,3,0,1]"); dpp_op("v_max_f32", SG+1, "row_ror:4")
    A(f"v_sub_f32 v{SG}, v{SG}, v{SG+1}"); A(f"v_mul_f32 v{SG}, s{t7}, v{SG}"); A(f"v_exp_f32 v{SG}, v{SG}"); nop(1)
    A(f"v_mul_f32 v{SG+2}, v{SG}, v{SG+2}")
    dpp_op("v_add_f32", SG+2, "quad_perm:[1,0,3,2]"); dpp_op("v_add_f32", SG+2, "quad_perm:[2,3,0,1]"); dpp_op("v_add_f32", SG+2, "row_ror:4")
    A(f"v_rcp_f32 v{SG+2}, v{SG+2}"); nop(1)
    A(f"v_mul_f32 v{vW}, v{SG}, v{SG+2}")
    for e in range(4): A(f"v_mov_b32 v{ACC+e}, v{DF+4*e}")
    C("O partial gather (retry only the lanes still missing)")
    A(f"s_mov_b64 s[{mA}:{mA+1}], -1"); A(f"s_mov_b64 s[{mB}:{mB+1}], -1")
    A(f"s_mov_b32 s{sSPIN}, 0")
    lab("L_opoll")
    A("s_waitcnt vmcnt(0)")
    for p, mk in ((0, mA), (1, mB)):
        A(f"v_bitop3_b32 v{vT0}, v{OG+8*p+1}, v{OG+8*p+3}, s{sTAG} bitop3:0x7e")
        A(f"v_bitop3_b32 v{vT1}, v{OG+8*p+5}, v{OG+8*p+7}, s{sTAG} bitop3:0x7e")
        A(f"v_or_b32 v{vT0}, v{vT0}, v{vT1}")
        A(f"v_cmp_ne_u32 s[{mk}:{mk+1}], 0, v{vT0}")
    A(f"s_or_b64 s[{mC}:{mC+1}], s[{mA}:{mA+1}], s[{mB}:{mB+1}]")
    A("s_cbranch_scc0 L_ook")
    A(f"s_add_u32 s{sSPIN}, s{sSPIN}, 1"); A(f"s_cmp_lt_u32 s{sSPIN}, {SPIN_MAX}"); A("s_cbranch_scc0 L_ook")
    if o['sleep_o']: A(f"s_sleep {o['sleep_o']}")
    A(f"s_mov_b64 exec, s[{mA}:{mA+1}]"); A("s_cbranch_execz L_o1")
    o_loads(0)
    lab("L_o1")
    A(f"s_mov_b64 exec, s[{mB}:{mB+1}]"); A("s_cbranch_execz L_o2")
    o_loads(1)
    lab("L_o2")
    A("s_mov_b64 exec, -1")
    A("s_branch L_opoll")
    lab("L_ook")
    stamp(8)
    for p in range(2):
        A(f"v_mov_b32 v{OG+8*p+1}, v{OG+8*p+4}"); A(f"v_mov_b32 v{OG+8*p+3}, v{OG+8*p+6}")
    nop(1)
    seq = [(p, e) for p in range(2) for e in range(4)]
    def fm(idx):
        p, e = seq[idx]
        for r in range(4): A(f"v_fmac_f32_dpp v{ACC+e}, v{vW}, v{DD+16*p+4*e+r} row_newbcast:{4*p+r} {DPP}")
    for idx, (p, e) in enumerate(seq):
        A(f"v_mfma_f32_16x16x32_bf16 {R(DD+16*p+4*e,4)}, {R(OG+8*p,4)}, {R(BW+4*e,4)}, 0")
    nop(1)
    for p in range(2):
        for r in range(4):
            for e in range(4):
                A(f"v_fmac_f32_dpp v{ACC+e}, v{vW}, v{DD+16*p+4*e+r} row_newbcast:{4*p+r} {DPP}")
    A(f"ds_write_b128 v{vXW}, {R(ACC,4)}")
    A("s_waitcnt lgkmcnt(0)")
    A("s_barrier")
    A(f"s_cmp_ge_u32 s{sWID}, 2"); A("s_cbranch_scc1 L_final")
    for k in range(4): A(f"ds_read_b64 {R(8+2*k,2)}, v{vXR2} offset:{1024*k}")
    A(f"v_mov_b32 v17, s{sTAG}"); A(f"v_mov_b32 v19, s{sTAG}")
    A("s_waitcnt lgkmcnt(2)"); A("v_pk_add_f32 v[8:9], v[8:9], v[10:11]")
    A("s_waitcnt lgkmcnt(0)"); A("v_pk_add_f32 v[12:13], v[12:13], v[14:15]")
    A("v_add_f32 v16, v8, v12"); A("v_add_f32 v18, v9, v13")
    A(f"buffer_store_dwordx4 v[16:19], v{vHA}, {S4(rWS)}, s{sH2o} offen sc1")
    if stamps:
        stamp(9)
        A(f"s_cmp_eq_u32 s{sWID}, 0"); A("s_cbranch_scc1 L_wstamp0")
    A("s_endpgm")
    lab("L_final")
    A(f"s_cmp_eq_u32 s{sWID}, 2"); A("s_cbranch_scc0 L_end")
    C("final reduction over heads for 8 outputs")
    srd(rB, sOUT, 4096)
    A(f"v_lshlrev_b32 v{vT1}, 4, v0")
    A(f"s_mov_b32 s{sSPIN}, 0")
    d = o['delay_h2']
    if d: A(f"s_sleep {d}")
    lab("L_hpoll")
    A(f"buffer_load_dwordx4 v[8:11], v{vT1}, {S4(rWS)}, s{sRo} offen sc1")
    A(f"buffer_load_dwordx4 v[12:15], v{vT1}, {S4(rWS)}, s{sRo} offen offset:1024 sc1")
    A("s_waitcnt vmcnt(0)")
    A(f"v_bitop3_b32 v9, v9, v11, s{sTAG} bitop3:0x7e"); A(f"v_bitop3_b32 v13, v13, v15, s{sTAG} bitop3:0x7e")
    A("v_or_b32 v9, v9, v13")
    A("v_cmp_ne_u32 vcc, 0, v9")
    A("s_cbranch_vccz L_hok")
    if o['sleep_h2']: A(f"s_sleep {o['sleep_h2']}")
    A(f"s_add_u32 s{sSPIN}, s{sSPIN}, 1"); A(f"s_cmp_lt_u32 s{sSPIN}, {SPIN_MAX}"); A("s_cbranch_scc1 L_hpoll")
    lab("L_hok")
    A("v_add_f32 v8, v8, v12"); A("v_add_f32 v10, v10, v14")
    nop(1)
    for ctl in ("row_ror:4", "row_ror:8"):
        A(f"v_add_f32_dpp v8, v8, v8 {ctl} {DPP}"); A(f"v_add_f32_dpp v10, v10, v10 {ctl} {DPP}"); nop(1)
    for sw in ("v_permlane16_swap_b32", "v_permlane32_swap_b32"):
        A("v_mov_b32 v9, v8"); A("v_mov_b32 v11, v10"); nop(2)
        A(f"{sw} v8, v9"); A(f"{sw} v10, v11"); nop(1)
        A("v_add_f32 v8, v8, v9"); A("v_add_f32 v10, v10, v11")
    A(f"v_lshlrev_b32 v12, 16, v{vXR}"); A(f"v_and_b32 v13, 0xffff0000, v{vXR}")
    A("v_add_f32 v8, v8, v12"); A("v_add_f32 v10, v10, v13")
    A("v_cvt_pk_bf16_f32 v8, v8, v10")
    A(f"s_lshl_b32 s{t1}, s2, 4")
    A("s_mov_b64 exec, 15")
    A(f"buffer_store_dword v8, v{vXR+1}, {S4(rB)}, s{t1} offen")
    A("s_cmp_eq_u32 s2, 0"); A("s_cbranch_scc0 L_noep")
    C("advance the hand-off epoch (every workgroup has read it by now)")
    A("s_mov_b64 exec, 1")
    A(f"s_sub_u32 s{t1}, s{sTAG}, 0x7F4A7C15"); A(f"s_mul_i32 s{t1}, s{t1}, {hex(pow(0x9E3779B1, -1, 1<<32))}"); A(f"s_add_u32 s{t1}, s{t1}, 1")
    A(f"v_mov_b32 v9, s{t1}"); A("v_mov_b32 v10, 0")
    A(f"buffer_store_dword v9, v10, {S4(rWS)}, 0 offen offset:{WS_EPOCH} sc1")
    lab("L_noep")
    if stamps:
        A("s_mov_b64 exec, -1")
        stamp(10)
        A("s_waitcnt lgkmcnt(0)")
        A(f"s_add_u32 s{t2}, s{sWS}, 0x10000000"); A(f"s_addc_u32 s{t3}, s{sWS+1}, 0")
        A(f"s_mul_i32 s{t1}, s2, 128"); A(f"v_mov_b32 v6, s{t1}")
        A(f"v_mov_b32 v8, s{sST+20}"); A(f"v_mov_b32 v9, s{sST+21}")
        A(f"global_store_dwordx2 v6, v[8:9], s[{t2}:{t3}] offset:80")
    A("s_endpgm")
    if stamps:
        lab("L_wstamp0")
        A("s_waitcnt lgkmcnt(0)")
        A(f"s_add_u32 s{t2}, s{sWS}, 0x10000000"); A(f"s_addc_u32 s{t3}, s{sWS+1}, 0")
        A(f"s_mul_i32 s{t1}, s2, 128"); A(f"v_mov_b32 v6, s{t1}")
        for i in range(10):
            A(f"v_mov_b32 v8, s{sST+2*i}"); A(f"v_mov_b32 v9, s{sST+2*i+1}")
            A(f"global_store_dwordx2 v6, v[8:9], s[{t2}:{t3}] offset:{8*i}"); nop(2)
        A("s_endpgm")

    L.append(".p2align 6")
    lab("L_att")
    C("---- attention waves 4..7")
    sAW, sBASE, sBLK, sLB = t0, t1, t2, t3
    VV, PA, PT, XX, YY = 128, 64, 24, 8, 12
    A(f"s_sub_u32 s{sAW}, s{sWID}, 4")
    A(f"s_lshr_b32 s{sBASE}, s{sR}, 3"); A(f"s_lshl_b32 s{sBASE}, s{sBASE}, 3"); A(f"s_add_u32 s{sBASE}, s{sBASE}, s{sHKV}"); A(f"s_lshl_b32 s{sBASE}, s{sBASE}, 22")
    A(f"s_and_b32 s{t4}, s{sR}, 7"); A(f"s_lshl_b32 s{t4}, s{t4}, 17"); A(f"s_add_u32 s{sBASE}, s{sBASE}, s{t4}"); A(f"s_add_u32 s{sBASE}, s{sBASE}, {12288*256}")
    A(f"s_add_u32 s{sBLK}, s{sR}, s{sAW}")
    if o['rotx']:
        A(f"s_mul_i32 s{t4}, s{sHKV}, {o['rotx']}"); A(f"s_add_u32 s{sBLK}, s{sBLK}, s{t4}")
    A(f"s_lshl_b32 s{sBLK}, s{sBLK}, 12")
    A(f"s_lshl_b32 s{sLB}, s{sAW}, 15")
    A(f"v_lshlrev_b32 v4, 2, v{vSLAB}"); A(f"v_xor_b32 v4, v4, v{vN}"); A(f"v_lshlrev_b32 v5, 8, v{vSLAB}")
    for a in range(4):
        A(f"v_xor_b32 v{16+a}, {a}, v4"); A(f"v_lshl_add_u32 v{16+a}, v{16+a}, 4, v5")
    A("v_lshlrev_b32 v20, 4, v0")
    A(f"s_lshl_b32 s{t4}, s{sAW}, 2"); A(f"s_add_u32 s{t4}, s{t4}, {L_F}"); A(f"v_mov_b32 v21, s{t4}"); A("v_mov_b32 v22, 1")
    A("s_waitcnt lgkmcnt(0)")
    srd(rA, sK, 0x8000000); srd(rB, sV, 0x8000000)
    load_epoch()
    A(f"s_mov_b32 s{t5}, s{sBLK}"); A(f"s_mov_b32 m0, s{sLB}"); A(f"s_add_u32 s{t6}, s{sLB}, 32768")
    A("s_barrier")
    lab("L_kloop")
    A(f"s_and_b32 s{t4}, s{t5}, 0x1ffff"); A(f"s_add_u32 s{t4}, s{t4}, s{sBASE}")
    for a in range(4): A(f"buffer_load_dwordx4 v{16+a}, {S4(rA)}, s{t4} offen offset:{1024*a} nt lds")
    A(f"s_add_u32 s{t5}, s{t5}, 16384"); A("s_add_u32 m0, m0, 4096")
    A(f"s_cmp_lt_u32 m0, s{t6}"); A("s_cbranch_scc1 L_kloop")
    for i in range(32):
        if i % 4 == 0:
            A(f"s_and_b32 s{t4}, s{sBLK}, 0x1ffff"); A(f"s_add_u32 s{t4}, s{t4}, s{sBASE}"); A(f"s_add_u32 s{sBLK}, s{sBLK}, 16384")
        A(f"buffer_load_dwordx4 {R(VV+4*i,4)}, v20, {S4(rB)}, s{t4} offen offset:{1024*(i&3)} nt")
        if i + 1 == o['kwait']:
            A(f"s_waitcnt vmcnt({o['kwait']})"); A("ds_write_b32 v21, v22")
    srd(rWS, sWS, WS_END)
    A(f"v_and_b32 v4, 3, v{vN}"); A("v_mul_u32_u24 v4, 320, v4"); A(f"v_lshl_add_u32 v4, v{vSLAB}, 4, v4")
    A(f"s_mul_i32 s{t4}, s{sAW}, 1280"); A(f"s_add_u32 s{t4}, s{t4}, {L_P}"); A(f"v_add_u32 v4, s{t4}, v4")
    A(f"v_lshrrev_b32 v5, 2, v{vN}"); A(f"v_mov_b32 v6, {L_Z}")
    for g in range(4):
        A(f"v_cmp_eq_u32 vcc, {g}, v5"); nop(2); A(f"v_cndmask_b32 v{16+g}, v6, v4, vcc")
    A(f"v_mov_b32 v4, {L_MW}")
    A(f"s_lshl_b32 s{t4}, s{sAW}, 4"); A(f"s_add_u32 s{t4}, s{t4}, {L_MW}"); A(f"v_mov_b32 v5, s{t4}")
    A(f"s_lshl_b32 s{t4}, s{sAW}, 11"); A(f"s_add_u32 s{t4}, s{t4}, {L_O}"); A(f"v_lshl_add_u32 v21, v0, 3, s{t4}")
    A(f"s_lshl_b32 s{t4}, s{sAW}, 9"); A(f"s_add_u32 s{t4}, s{t4}, {L_O}"); A(f"v_lshl_add_u32 v22, v0, 3, s{t4}")
    A(f"v_lshl_add_u32 v23, v{vN}, 2, v{vSLAB}"); A("v_lshlrev_b32 v23, 3, v23")
    A(f"s_lshl_b32 s{t5}, s{sHKV}, 2"); A(f"s_add_u32 s{t5}, s{t5}, s{sAW}"); A(f"s_lshl_b32 s{t5}, s{t5}, 14")
    A(f"s_lshl_b32 s{t4}, s{sR}, 9"); A(f"s_add_u32 s{t5}, s{t5}, s{t4}"); A(f"s_add_u32 s{t5}, s{t5}, {WS_OP}")
    A("s_waitcnt lgkmcnt(0)")
    make_tag()
    A("s_barrier")
    for u in range(4):
        for g in range(4): A(f"ds_read_b128 {R(PA+16*u+4*g,4)}, v{16+g} offset:{64*u}")
        if u == 1: A("s_waitcnt lgkmcnt(4)")
    FS = 56
    A("s_waitcnt lgkmcnt(6)")
    for k in range(4): A(f"ds_read_b128 {R(PT+4*k,4)}, v4 offset:{16*k}")
    A(f"ds_read_b128 {R(FS,4)}, v5")
    A(f"s_mov_b32 s{t7}, {hex(f2u(1.4426950408889634))}")
    A("s_waitcnt lgkmcnt(0)")
    for h in range(4): A(f"v_max3_f32 v{PT+h}, v{PT+h}, v{PT+4+h}, v{PT+8+h}")
    for h in range(4): A(f"v_max_f32 v{PT+h}, v{PT+h}, v{PT+12+h}")
    for h in range(4): A(f"v_sub_f32 v{FS+h}, v{FS+h}, v{PT+h}")
    for h in range(4): A(f"v_mul_f32 v{FS+h}, s{t7}, v{FS+h}")
    for h in range(4): A(f"v_exp_f32 v{FS+h}, v{FS+h}")
    C("P.V")
    for u in range(4):
        A(f"s_waitcnt vmcnt({24-8*u})")
        def perms(e):
            for i in range(4):
                A(f"v_perm_b32 v{PT+4*e+i}, v{VV+4*(8*u+2*i+1)+(e>>1)}, v{VV+4*(8*u+2*i)+(e>>1)}, s{sHI if e&1 else sLO}")
        def mf(e):
            acc = YY if e & 1 else XX
            first = (u == 0 and e < 2)
            A(f"v_mfma_f32_16x16x32_bf16 {R(acc,4)}, {R(PA+16*u+4*(e>>1),4)}, {R(PT+4*e,4)}, {'0' if first else R(acc,4)}")
        perms(0)
        for e in range(1, 8):
            perms(e); mf(e-1)
        nop(2)
        mf(7)
    nop(7)
    for h in range(4):
        A(f"v_mul_f32 v{PT+2*h}, v{XX+h}, v{FS+h}")
    for h in range(4):
        A(f"v_mul_f32 v{PT+2*h+1}, v{YY+h}, v{FS+h}")
    for h in range(4): A(f"ds_write_b64 v21, {R(PT+2*h,2)} offset:{512*h}")
    A("s_waitcnt lgkmcnt(0)")
    A("s_barrier")
    for k in range(4): A(f"ds_read_b64 {R(PT+8+2*k,2)}, v22 offset:{2048*k}")
    A(f"v_mov_b32 v{PT+1}, s{sTAG}")
    A("s_waitcnt lgkmcnt(2)"); A(f"v_pk_add_f32 {R(PT+8,2)}, {R(PT+8,2)}, {R(PT+10,2)}")
    A("s_waitcnt lgkmcnt(0)"); A(f"v_pk_add_f32 {R(PT+12,2)}, {R(PT+12,2)}, {R(PT+14,2)}")
    A(f"v_pk_add_f32 {R(PT+8,2)}, {R(PT+8,2)}, {R(PT+12,2)}")
    A(f"v_cvt_pk_bf16_f32 v{PT}, v{PT+8}, v{PT+9}")
    A(f"buffer_store_dwordx2 {R(PT,2)}, v23, {S4(rWS)}, s{t5} offen sc1")
    lab("L_end")
    A("s_endpgm")
    lab("L_codeend")
    L.append('.section .rodata,"a"'); L.append(".p2align 6"); L.append(f".amdhsa_kernel {NAME}_kernel")
    for s in ("next_free_vgpr 256", "next_free_sgpr 96", "accum_offset 256", "group_segment_fixed_size 0", "kernarg_size 96",
              "user_sgpr_count 2", "user_sgpr_kernarg_segment_ptr 1", "system_sgpr_workgroup_id_x 1",
              "float_denorm_mode_32 3", "float_denorm_mode_16_64 3"):
        L.append("  .amdhsa_" + s)
    L.append(".end_amdhsa_kernel")
    return "\n".join(L) + "\n"

if __name__ == "__main__":
    import json
    out = sys.argv[1]
    st = len(sys.argv) > 2 and sys.argv[2] == "1"
    opts = json.loads(sys.argv[3]) if len(sys.argv) > 3 else None
    open(out, "w").write(gen(st, opts))
```

```python
import sys, struct
NAME = "parallel_sum__sliding_block_cached__swiglu_ffn__decode"

def f2u(x): return struct.unpack("<I", struct.pack("<f", x))[0]

WS_EPOCH = 0
WS_QP = 0x1000
WS_GU = WS_QP + 512*1024
WS_ST = WS_GU + 448*1024
WS_OP = WS_ST + 16*1024
WS_H2 = WS_OP + 512*1024
WS_END = WS_H2 + 512*1024
L_K = 0
L_Q = 131072
L_Z = L_Q + 1280
L_F = L_Z + 256
L_ST = L_F + 64
L_MW = L_ST + 128
L_P = L_MW + 64
L_O = L_P + 4*1280
L_X = L_O + 8192
L_END = L_X + 4096
assert L_P % 16 == 0 and L_O % 16 == 0 and L_X % 16 == 0

SPIN_MAX = 1 << 16

def gen(stamps=False, opts=None):
    o = dict(kwait=12, rotx=0, sleep_q=1, sleep_o=1, sleep_h2=1, delay_h2=0, delay_o=0)
    if opts: o.update(opts)
    L = []
    def A(s): L.append("    " + s)
    def lab(s): L.append(s + ":")
    def C(s): L.append("    ; " + s)
    def nop(n): A(f"s_nop {n-1}")
    DPP = "row_mask:0xf bank_mask:0xf"
    sX, sK, sV, sWQ, sWO, sG, sU, sDN, sOUT, sDBG, sWS = 4, 6, 8, 10, 12, 16, 18, 20, 22, 24, 26
    sWID, sHKV, sR, sTAG = 28, 29, 30, 31
    rWS, rA, rB = 32, 36, 40
    sLO, sHI = 44, 45
    sSPIN = 46
    sH, sCB, sJB = 47, 48, 49
    t0, t1, t2, t3, t4, t5, t6, t7 = 50, 51, 52, 53, 54, 55, 56, 57
    mA, mB, mC = 58, 60, 62
    sST = 70
    nstamp = [0]
    def stamp(i):
        if stamps: A(f"s_memrealtime s[{sST+2*i}:{sST+2*i+1}]")
    def srd(r, p, nrec):
        A(f"s_mov_b32 s{r}, s{p}"); A(f"s_and_b32 s{r+1}, s{p+1}, 0xffff")
        A(f"s_mov_b32 s{r+2}, {nrec}"); A(f"s_mov_b32 s{r+3}, 0x20000")
    def R(a, n): return f"v[{a}:{a+n-1}]"
    def S4(r): return f"s[{r}:{r+3}]"
    vLANE, vSLAB, vN = 0, 2, 3
    def load_epoch():
        A(f"s_load_dword s{sTAG}, s[{sWS}:{sWS+1}], {WS_EPOCH}")
    def make_tag():
        A(f"s_mul_i32 s{sTAG}, s{sTAG}, 0x9E3779B1"); A(f"s_add_u32 s{sTAG}, s{sTAG}, 0x7F4A7C15")
    def xsum_slabs(v, tmp, op="v_add_f32"):
        A(f"v_mov_b32 v{tmp}, v{v}"); nop(2)
        A(f"v_permlane16_swap_b32 v{v}, v{tmp}"); nop(1)
        A(f"{op} v{v}, v{v}, v{tmp}")
        A(f"v_mov_b32 v{tmp}, v{v}"); nop(2)
        A(f"v_permlane32_swap_b32 v{v}, v{tmp}"); nop(1)
        A(f"{op} v{v}, v{v}, v{tmp}")
    def dpp_op(op, v, ctl):
        nop(2); A(f"{op}_dpp v{v}, v{v}, v{v} {ctl} {DPP}")
    def bf16r(v):
        A(f"v_cvt_pk_bf16_f32 v{v}, v{v}, v{v}"); A(f"v_and_b32 v{v}, 0xffff0000, v{v}")
    def lds_spin(name, vaddr, vtmp, mask):
        A(f"s_mov_b32 s{sSPIN}, 0")
        lab(f"L_spin_{name}")
        A(f"ds_read_b32 v{vtmp}, v{vaddr}")
        A("s_waitcnt lgkmcnt(0)")
        A(f"v_cmp_ne_u32 vcc, 0, v{vtmp}")
        A(f"s_and_b32 s{t7}, vcc_lo, {mask}")
        A(f"s_cmp_eq_u32 s{t7}, {mask}")
        A(f"s_cbranch_scc1 L_spin_{name}_done")
        A("s_sleep 2")
        A(f"s_add_u32 s{sSPIN}, s{sSPIN}, 1")
        A(f"s_cmp_lt_u32 s{sSPIN}, {SPIN_MAX*4}")
        A(f"s_cbranch_scc1 L_spin_{name}")
        lab(f"L_spin_{name}_done")

    L.append(f"; @launch grid=(256,1,1) block=(512,1,1) lds={L_END}")
    L.append('.amdgcn_target "amdgcn-amd-amdhsa--gfx950"')
    L.append(".text"); L.append(f".globl {NAME}_kernel"); L.append(".p2align 8"); L.append(f".type {NAME}_kernel,@function")
    lab(f"{NAME}_kernel")
    A("s_cmp_ge_u32 s2, 256"); A("s_cbranch_scc1 L_end")
    A("s_load_dwordx16 s[4:19], s[0:1], 0")
    A("s_load_dwordx8 s[20:27], s[0:1], 64")
    if stamps:
        for i in range(1, 12): A(f"s_mov_b64 s[{sST+2*i}:{sST+2*i+1}], 0")
    stamp(0)
    A("v_lshrrev_b32 v1, 6, v0")
    A("v_and_b32 v0, 63, v0")
    A(f"s_and_b32 s{sHKV}, s2, 7")
    A(f"v_readfirstlane_b32 s{sWID}, v1")
    A(f"s_lshr_b32 s{sR}, s2, 3")
    A(f"v_lshrrev_b32 v{vSLAB}, 4, v0")
    A(f"v_and_b32 v{vN}, 15, v0")
    A(f"s_mov_b32 s{sLO}, 0x05040100"); A(f"s_mov_b32 s{sHI}, 0x07060302")
    A(f"s_cmp_ge_u32 s{sWID}, 4"); A("s_cbranch_scc1 L_att")
    A(f"s_cmp_ge_u32 s{sWID}, 2"); A("s_cbranch_scc1 L_aux")

    C("---- service waves 0,1: projection tile (wave0: wq, wave1: gate/up)")
    sSTR, sTOFF, sPOFF, sPPI, sKQ = t0, t1, t2, t3, t4
    A(f"s_cmp_eq_u32 s{sWID}, 0"); A("s_cbranch_scc1 L_pq")
    A(f"s_cmp_ge_u32 s{sR}, 28"); A("s_cbranch_scc1 L_aux")
    A(f"s_movk_i32 s{sSTR}, 3584"); A(f"s_lshr_b32 s{sKQ}, s{sHKV}, 1")
    A(f"s_mul_i32 s{sTOFF}, s{sKQ}, {128*3584}"); A(f"s_lshl_b32 s{t5}, s{sR}, 7"); A(f"s_add_u32 s{sTOFF}, s{sTOFF}, s{t5}")
    A(f"s_and_b32 s{t6}, s{sHKV}, 1"); A(f"s_lshl_b32 s{t5}, s{t6}, 2"); A(f"s_add_u32 s{t5}, s{t5}, s{sKQ}")
    A(f"s_mul_i32 s{sPOFF}, s{t5}, {4*14336}"); A(f"s_lshl_b32 s{t5}, s{sR}, 9"); A(f"s_add_u32 s{sPOFF}, s{sPOFF}, s{t5}")
    A(f"s_add_u32 s{sPOFF}, s{sPOFF}, {WS_GU}"); A(f"s_movk_i32 s{sPPI}, 14336")
    A(f"s_mov_b32 s{rA+2}, {512*3584}")
    A("s_waitcnt lgkmcnt(0)")
    A(f"s_cmp_eq_u32 s{t6}, 0")
    A(f"s_cselect_b32 s{rA}, s{sG}, s{sU}"); A(f"s_cselect_b32 s{rA+1}, s{sG+1}, s{sU+1}")
    A("s_branch L_proj")
    lab("L_pq")
    A(f"s_movk_i32 s{sSTR}, 8192"); A(f"s_and_b32 s{sKQ}, s{sR}, 3")
    A(f"s_lshr_b32 s{t5}, s{sR}, 2"); A(f"s_lshl_b32 s{t6}, s{sHKV}, 3"); A(f"s_add_u32 s{t5}, s{t5}, s{t6}")
    A(f"s_lshl_b32 s{sTOFF}, s{sKQ}, 20"); A(f"s_lshl_b32 s{t6}, s{t5}, 7"); A(f"s_add_u32 s{sTOFF}, s{sTOFF}, s{t6}")
    A(f"s_lshl_b32 s{sPOFF}, s{sKQ}, 17"); A(f"s_lshl_b32 s{t6}, s{t5}, 9"); A(f"s_add_u32 s{sPOFF}, s{sPOFF}, s{t6}")
    A(f"s_add_u32 s{sPOFF}, s{sPOFF}, {WS_QP}"); A(f"s_mov_b32 s{sPPI}, 32768")
    A(f"s_mov_b32 s{rA+2}, 0x400000")
    A("s_waitcnt lgkmcnt(0)")
    A(f"s_mov_b32 s{rA}, s{sWQ}"); A(f"s_mov_b32 s{rA+1}, s{sWQ+1}")
    lab("L_proj")
    A(f"s_and_b32 s{rA+1}, s{rA+1}, 0xffff"); A(f"s_mov_b32 s{rA+3}, 0x20000")
    srd(rB, sX, 4096)
    XS, XA, T, F = 8, 24, 40, 104
    vA0, vA1, vA2 = 4, 5, 6
    A(f"v_lshrrev_b32 v{vA2}, 2, v{vN}"); A(f"v_lshlrev_b32 v{vA2}, 10, v{vA2}")
    A(f"v_and_b32 v{vA0}, 3, v{vN}"); A(f"v_lshl_add_u32 v{vA0}, v{vSLAB}, 2, v{vA0}"); A(f"v_lshl_add_u32 v{vA0}, v{vA0}, 6, v{vA2}")
    A(f"v_lshl_add_u32 v{vA1}, v{vSLAB}, 4, v{vA2}")
    A(f"s_lshl_b32 s{t5}, s{sKQ}, 8")
    for j in range(4): A(f"buffer_load_dwordx4 {R(XS+4*j,4)}, v{vA0}, {S4(rB)}, 0 offen offset:{16*j}")
    for j in range(4): A(f"buffer_load_dwordx4 {R(XA+4*j,4)}, v{vA1}, {S4(rB)}, s{t5} offen offset:{64*j}")
    A(f"s_lshl_b32 s{t5}, s{sSTR}, 3")
    A(f"v_mul_lo_u32 v{vA2}, v{vSLAB}, s{t5}"); A(f"v_lshl_add_u32 v{vA2}, v{vN}, 3, v{vA2}")
    A(f"s_mul_i32 s{t6}, s{sSTR}, 25")
    for st in range(4):
        for j in range(8):
            i = 8*st + j
            A(f"buffer_load_dwordx2 {R(T+2*i,2)}, v{vA2}, {S4(rA)}, s{sTOFF} offen nt")
            if i < 31: A(f"s_add_u32 s{sTOFF}, s{sTOFF}, s{sSTR if j < 7 else t6}")
    load_epoch()
    A("s_barrier")
    C("layernorm")
    A("s_waitcnt vmcnt(36)")
    for i in range(16):
        A(f"v_lshlrev_b32 v{F+2*i}, 16, v{XS+i}"); A(f"v_and_b32 v{F+2*i+1}, 0xffff0000, v{XS+i}")
    AC = XS
    A(f"v_pk_add_f32 {R(AC,2)}, {R(F,2)}, {R(F+2,2)}"); A(f"v_pk_add_f32 {R(AC+2,2)}, {R(F+4,2)}, {R(F+6,2)}")
    for i in range(4, 16, 2):
        A(f"v_pk_add_f32 {R(AC,2)}, {R(AC,2)}, {R(F+2*i,2)}"); A(f"v_pk_add_f32 {R(AC+2,2)}, {R(AC+2,2)}, {R(F+2*i+2,2)}")
    A(f"v_pk_add_f32 {R(AC,2)}, {R(AC,2)}, {R(AC+2,2)}")
    MU, TM = XS+4, XS+6
    A(f"v_add_f32 v{MU}, v{AC}, v{AC+1}")
    dpp_op("v_add_f32", MU, "quad_perm:[1,0,3,2]"); dpp_op("v_add_f32", MU, "quad_perm:[2,3,0,1]")
    xsum_slabs(MU, TM)
    A(f"v_mul_f32 v{MU}, {hex(f2u(1/512))}, v{MU}"); A(f"v_mov_b32 v{MU+1}, v{MU}")
    for i in range(16): A(f"v_pk_add_f32 {R(F+2*i,2)}, {R(F+2*i,2)}, {R(MU,2)} neg_lo:[0,1] neg_hi:[0,1]")
    A(f"v_pk_mul_f32 {R(AC,2)}, {R(F,2)}, {R(F,2)}"); A(f"v_pk_mul_f32 {R(AC+2,2)}, {R(F+2,2)}, {R(F+2,2)}")
    for i in range(2, 16, 2):
        A(f"v_pk_fma_f32 {R(AC,2)}, {R(F+2*i,2)}, {R(F+2*i,2)}, {R(AC,2)}"); A(f"v_pk_fma_f32 {R(AC+2,2)}, {R(F+2*i+2,2)}, {R(F+2*i+2,2)}, {R(AC+2,2)}")
    A(f"v_pk_add_f32 {R(AC,2)}, {R(AC,2)}, {R(AC+2,2)}")
    VR = XS+8
    A(f"v_add_f32 v{VR}, v{AC}, v{AC+1}")
    dpp_op("v_add_f32", VR, "quad_perm:[1,0,3,2]"); dpp_op("v_add_f32", VR, "quad_perm:[2,3,0,1]")
    xsum_slabs(VR, TM)
    A(f"v_mul_f32 v{VR}, {hex(f2u(1/512))}, v{VR}")
    bf16r(MU); A(f"v_mov_b32 v{MU+1}, v{MU}")
    bf16r(VR)
    A(f"v_add_f32 v{VR}, {hex(f2u(1e-5))}, v{VR}"); bf16r(VR)
    A(f"v_sqrt_f32 v{VR}, v{VR}"); nop(1); bf16r(VR)
    RC = XS+10
    A(f"v_rcp_f32 v{RC}, v{VR}"); nop(1)
    A(f"v_fma_f32 v{TM}, -v{VR}, v{RC}, 1.0"); A(f"v_fma_f32 v{RC}, v{TM}, v{RC}, v{RC}"); A(f"v_mov_b32 v{RC+1}, v{RC}")
    A("s_waitcnt vmcnt(32)")
    for i in range(16):
        A(f"v_lshlrev_b32 v{F+2*i}, 16, v{XA+i}"); A(f"v_and_b32 v{F+2*i+1}, 0xffff0000, v{XA+i}")
    for i in range(16): A(f"v_pk_add_f32 {R(F+2*i,2)}, {R(F+2*i,2)}, {R(MU,2)} neg_lo:[0,1] neg_hi:[0,1]")
    for i in range(16): A(f"v_cvt_pk_bf16_f32 v{XA+i}, v{F+2*i}, v{F+2*i+1}")
    for i in range(16):
        A(f"v_lshlrev_b32 v{F+2*i}, 16, v{XA+i}"); A(f"v_and_b32 v{F+2*i+1}, 0xffff0000, v{XA+i}")
    for i in range(16): A(f"v_pk_mul_f32 {R(F+2*i,2)}, {R(F+2*i,2)}, {R(RC,2)}")
    for i in range(16): A(f"v_cvt_pk_bf16_f32 v{XA+i}, v{F+2*i}, v{F+2*i+1}")
    C("projection MFMAs")
    D = XS
    BB = F
    for st in range(4):
        A(f"s_waitcnt vmcnt({24-8*st})")
        bb = BB + 16*(st & 1)
        for e in range(4):
            for i in range(4):
                A(f"v_perm_b32 v{bb+4*e+i}, v{T+2*(8*st+2*i+1)+(e>>1)}, v{T+2*(8*st+2*i)+(e>>1)}, s{sHI if e&1 else sLO}")
        nop(2)
        for e in range(4):
            A(f"v_mfma_f32_16x16x32_bf16 {R(D+4*e,4)}, {R(XA+4*st,4)}, {R(bb+4*e,4)}, {'0' if st==0 else R(D+4*e,4)}")
    srd(rWS, sWS, WS_END)
    A("s_waitcnt lgkmcnt(0)")
    make_tag()
    A(f"v_mul_lo_u32 v{vA0}, v{vSLAB}, s{sPPI}"); A(f"v_lshl_add_u32 v{vA0}, v{vN}, 5, v{vA0}")
    nop(4)
    A(f"v_mov_b32 v{D+1}, s{sTAG}"); A(f"v_mov_b32 v{D+2}, v{D+4}"); A(f"v_mov_b32 v{D+3}, s{sTAG}")
    A(f"v_mov_b32 v{D+9}, s{sTAG}"); A(f"v_mov_b32 v{D+10}, v{D+12}"); A(f"v_mov_b32 v{D+11}, s{sTAG}")
    A(f"buffer_store_dwordx4 {R(D,4)}, v{vA0}, {S4(rWS)}, s{sPOFF} offen sc1")
    A(f"buffer_store_dwordx4 {R(D+8,4)}, v{vA0}, {S4(rWS)}, s{sPOFF} offen offset:16 sc1")
    stamp(1)
    A(f"s_cmp_eq_u32 s{sWID}, 0"); A("s_cbranch_scc0 L_svc")
    A("s_waitcnt vmcnt(0)")
    A(f"v_mov_b32 v{vA0}, {L_F + 8*4}"); A(f"v_mov_b32 v{vA1}, 1")
    A(f"ds_write_b32 v{vA0}, v{vA1}")
    A("s_branch L_svc")

    lab("L_aux")
    C("---- waves 2,3 (and idle wave 1): LDS init, code prefetch, TLB warm")
    A(f"v_lshlrev_b32 v4, 2, v0"); A(f"v_add_u32 v4, {L_Z}, v4"); A("v_mov_b32 v5, 0")
    A("ds_write_b32 v4, v5"); A("ds_write_b32 v4, v5 offset:64")
    A(f"s_getpc_b64 s[{t0}:{t1}]")
    lab("L_pc")
    A(f"s_sub_u32 s{t0}, s{t0}, L_pc-{NAME}_kernel"); A(f"s_subb_u32 s{t1}, s{t1}, 0")
    A(f"s_and_b32 s{t2}, s{sWID}, 1"); A(f"s_lshl_b32 s{t2}, s{t2}, 12")
    A(f"v_lshl_add_u32 v6, v0, 6, s{t2}")
    A(f"v_min_u32 v6, L_codeend-{NAME}_kernel-4, v6")
    A(f"global_load_dword v7, v6, s[{t0}:{t1}]")
    A(f"v_add_u32 v6, 8192, v6"); A(f"v_min_u32 v6, L_codeend-{NAME}_kernel-4, v6")
    A(f"global_load_dword v7, v6, s[{t0}:{t1}]")
    A("s_waitcnt lgkmcnt(0)")
    load_epoch()
    srd(rWS, sWS, WS_END)
    A("s_barrier")
    A("s_waitcnt lgkmcnt(0)")
    make_tag()

    lab("L_svc")
    C("---- all service waves")
    vFL, vT0, vT1, vT2 = 4, 5, 6, 7
    A(f"s_lshr_b32 s{t0}, s{sR}, 3")
    A(f"s_lshl_b32 s{sH}, s{sHKV}, 2"); A(f"s_add_u32 s{sH}, s{sH}, s{t0}")
    A(f"s_and_b32 s{sCB}, s{sR}, 7")
    A(f"s_lshl_b32 s{sJB}, s{t0}, 3"); A(f"s_add_u32 s{sJB}, s{sJB}, s{sHKV}"); A(f"s_sub_u32 s{sJB}, s{sJB}, 4")
    vXR = 250
    srd(rB, sX, 4096)
    A(f"v_and_b32 v{vT0}, 3, v0"); A(f"v_lshlrev_b32 v{vXR+1}, 2, v{vT0}"); A(f"s_lshl_b32 s{t1}, s2, 4")
    A(f"buffer_load_dword v{vXR}, v{vXR+1}, {S4(rB)}, s{t1} offen")
    srd(rB, sOUT, 4096)
    A(f"buffer_load_dword v{vXR+2}, v{vXR+1}, {S4(rB)}, s{t1} offen")
    A(f"v_lshlrev_b32 v{vFL}, 2, v{vN}"); A(f"v_add_u32 v{vFL}, {L_F}, v{vFL}")
    lds_spin("go", vFL, vT0, "0x100")
    stamp(2)
    C("q gather: wave w <-> head w; lane l <-> d pair")
    QG = 8
    A(f"v_lshlrev_b32 v{vT1}, 4, v0")
    A(f"s_lshl_b32 s{t1}, s{t0}, 15"); A(f"s_lshl_b32 s{t2}, s{sHKV}, 12"); A(f"s_add_u32 s{t1}, s{t1}, s{t2}")
    A(f"s_lshl_b32 s{t2}, s{sWID}, 10"); A(f"s_add_u32 s{t1}, s{t1}, s{t2}"); A(f"s_add_u32 s{t1}, s{t1}, {WS_QP}")
    A(f"s_add_u32 s{t2}, s{t1}, {1<<17}"); A(f"s_add_u32 s{t3}, s{t1}, {2<<17}"); A(f"s_add_u32 s{t4}, s{t1}, {3<<17}")
    A(f"s_mov_b32 s{sSPIN}, 0")
    lab("L_qpoll")
    for k in range(4): A(f"buffer_load_dwordx4 {R(QG+4*k,4)}, v{vT1}, {S4(rWS)}, s{t1+k} offen sc1")
    A("s_waitcnt vmcnt(0)")
    for k in range(4): A(f"v_bitop3_b32 v{QG+4*k+1}, v{QG+4*k+1}, v{QG+4*k+3}, s{sTAG} bitop3:0x7e")
    A(f"v_or3_b32 v{QG+1}, v{QG+1}, v{QG+5}, v{QG+9}"); A(f"v_or_b32 v{QG+1}, v{QG+1}, v{QG+13}")
    A(f"v_cmp_ne_u32 vcc, 0, v{QG+1}")
    A("s_cbranch_vccz L_qok")
    A(f"s_sleep {o['sleep_q']}")
    A(f"s_add_u32 s{sSPIN}, s{sSPIN}, 1"); A(f"s_cmp_lt_u32 s{sSPIN}, {SPIN_MAX}"); A("s_cbranch_scc1 L_qpoll")
    lab("L_qok")
    A(f"v_add_f32 v{QG}, v{QG}, v{QG+4}"); A(f"v_add_f32 v{QG+2}, v{QG+2}, v{QG+6}")
    A(f"v_add_f32 v{QG+8}, v{QG+8}, v{QG+12}"); A(f"v_add_f32 v{QG+10}, v{QG+10}, v{QG+14}")
    A(f"v_add_f32 v{QG}, v{QG}, v{QG+8}"); A(f"v_add_f32 v{QG+2}, v{QG+2}, v{QG+10}")
    A(f"v_cvt_pk_bf16_f32 v{QG}, v{QG}, v{QG+2}")
    A(f"s_mul_i32 s{t1}, s{sWID}, 320"); A(f"s_add_u32 s{t1}, s{t1}, {L_Q}")
    A(f"v_lshl_add_u32 v{vT1}, v0, 2, s{t1}")
    A(f"ds_write_b32 v{vT1}, v{QG}")
    A(f"s_lshl_b32 s{t1}, s{sWID}, 2"); A(f"s_add_u32 s{t1}, s{t1}, {L_F+16}")
    A(f"v_mov_b32 v{vT1}, s{t1}"); A(f"v_mov_b32 v{vT2}, 1")
    A("s_waitcnt lgkmcnt(0)")
    A(f"ds_write_b32 v{vT1}, v{vT2}")
    stamp(3)
    C("issue g/u gather: lane (slab, b, kq): f = 64*jb + 16*w + 4*slab + (0..3)")
    GU = 200
    vGA = 216
    A(f"v_and_b32 v{vT0}, 3, v{vN}"); A(f"v_lshrrev_b32 v{vT1}, 2, v{vN}")
    A(f"v_lshl_add_u32 v{vT0}, v{vT0}, 2, v{vT1}")
    A(f"s_movk_i32 s{t1}, 14336"); A(f"v_mul_lo_u32 v{vT0}, v{vT0}, s{t1}")
    A(f"v_lshl_add_u32 v{vGA}, v{vSLAB}, 5, v{vT0}")
    sGO, sUO = 64, 65
    A(f"s_max_i32 s{t1}, s{sJB}, 0"); A(f"s_lshl_b32 s{sGO}, s{t1}, 9"); A(f"s_lshl_b32 s{t1}, s{sWID}, 7"); A(f"s_add_u32 s{sGO}, s{sGO}, s{t1}")
    A(f"s_add_u32 s{sGO}, s{sGO}, {WS_GU}"); A(f"s_add_u32 s{sUO}, s{sGO}, {16*14336}")
    def gu_loads():
        A(f"buffer_load_dwordx4 {R(GU,4)}, v{vGA}, {S4(rWS)}, s{sGO} offen sc1")
        A(f"buffer_load_dwordx4 {R(GU+4,4)}, v{vGA}, {S4(rWS)}, s{sGO} offen offset:16 sc1")
        A(f"buffer_load_dwordx4 {R(GU+8,4)}, v{vGA}, {S4(rWS)}, s{sUO} offen sc1")
        A(f"buffer_load_dwordx4 {R(GU+12,4)}, v{vGA}, {S4(rWS)}, s{sUO} offen offset:16 sc1")
    gu_loads()
    C("wait K_w landed and all q heads")
    A(f"s_lshl_b32 s{t1}, 1, s{sWID}"); A(f"s_or_b32 s{t1}, s{t1}, 0xf0")
    lds_spin("kq", vFL, vT0, f"s{t1}")
    stamp(4)
    QM = 8
    KF = 72
    vQA = 140
    A(f"v_and_b32 v{vT0}, 3, v{vN}"); A(f"v_mul_u32_u24 v{vT0}, 320, v{vT0}"); A(f"v_lshl_add_u32 v{vT0}, v{vSLAB}, 4, v{vT0}")
    A(f"v_add_u32 v{vT1}, {L_Q}, v{vT0}")
    A(f"v_lshrrev_b32 v{vT2}, 2, v{vN}")
    A(f"v_mov_b32 v{vQA+4}, {L_Z}")
    for u in range(4):
        A(f"v_cmp_eq_u32 vcc, {u}, v{vT2}"); nop(2)
        A(f"v_cndmask_b32 v{vQA+u}, v{vQA+4}, v{vT1}, vcc")
    for u in range(4):
        for c in range(4): A(f"ds_read_b128 {R(QM+16*u+4*c,4)}, v{vQA+u} offset:{64*c}")
    vKA = 146
    A(f"v_and_b32 v{vT1}, 3, v{vN}"); A(f"v_lshl_add_u32 v{vT1}, v{vT1}, 2, v{vT2}"); A(f"v_lshlrev_b32 v{vT1}, 8, v{vT1}")
    A(f"s_lshl_b32 s{t1}, s{sWID}, 15"); A(f"v_add_u32 v{vT1}, s{t1}, v{vT1}")
    A(f"v_xor_b32 v{vT2}, v{vSLAB}, v{vN}")
    for c in range(4):
        A(f"v_xor_b32 v{vKA+c}, {4*c}, v{vT2}"); A(f"v_lshl_add_u32 v{vKA+c}, v{vKA+c}, 4, v{vT1}")
    SD = 152
    def kread(i):
        gi, c = i >> 2, i & 3
        A(f"ds_read_b128 {R(KF+4*(i&15),4)}, v{vKA+c} offset:{gi*4096}")
    A("s_waitcnt lgkmcnt(0)")
    for i in range(12): kread(i)
    for i in range(32):
        gi, c = i >> 2, i & 3
        u, jh = gi >> 1, gi & 1
        outstanding = min(32, i + 12) - i - 1
        A(f"s_waitcnt lgkmcnt({outstanding})")
        first = (u == 0 and c == 0)
        A(f"v_mfma_f32_16x16x32_bf16 {R(SD+4*jh,4)}, {R(KF+4*(i&15),4)}, {R(QM+16*u+4*c,4)}, {'0' if first else R(SD+4*jh,4)}")
        if i + 12 < 32: kread(i + 12)
    nop(8)
    C("scores: round to bf16, scale, round; softmax numerator")
    SP = 160
    A(f"s_mov_b32 s{t1}, {hex(f2u(128**-0.5))}"); A(f"s_mov_b32 s{t2}, {hex(f2u(1.4426950408889634))}")
    for i in range(4): A(f"v_cvt_pk_bf16_f32 v{SP+i}, v{SD+2*i}, v{SD+2*i+1}")
    for i in range(4):
        A(f"v_lshlrev_b32 v{SD+2*i}, 16, v{SP+i}"); A(f"v_and_b32 v{SD+2*i+1}, 0xffff0000, v{SP+i}")
    for i in range(8): A(f"v_mul_f32 v{SD+i}, s{t1}, v{SD+i}")
    for i in range(4): A(f"v_cvt_pk_bf16_f32 v{SP+i}, v{SD+2*i}, v{SD+2*i+1}")
    for i in range(4):
        A(f"v_lshlrev_b32 v{SD+2*i}, 16, v{SP+i}"); A(f"v_and_b32 v{SD+2*i+1}, 0xffff0000, v{SP+i}")
    MX, SM = 164, 165
    A(f"v_max3_f32 v{MX}, v{SD}, v{SD+1}, v{SD+2}"); A(f"v_max3_f32 v{SM}, v{SD+3}, v{SD+4}, v{SD+5}")
    A(f"v_max3_f32 v{MX}, v{MX}, v{SD+6}, v{SD+7}"); A(f"v_max_f32 v{MX}, v{MX}, v{SM}")
    dpp_op("v_max_f32", MX, "row_ror:4"); dpp_op("v_max_f32", MX, "row_ror:8")
    xsum_slabs(MX, vT0, "v_max_f32")
    for i in range(8): A(f"v_sub_f32 v{SD+i}, v{SD+i}, v{MX}")
    for i in range(8): A(f"v_mul_f32 v{SD+i}, s{t2}, v{SD+i}")
    for i in range(8): A(f"v_exp_f32 v{SD+i}, v{SD+i}")
    nop(1)
    for i in range(4): A(f"v_cvt_pk_bf16_f32 v{SP+i}, v{SD+2*i}, v{SD+2*i+1}")
    A(f"v_add_f32 v{SM}, v{SD}, v{SD+1}"); A(f"v_add_f32 v{vT0}, v{SD+2}, v{SD+3}")
    A(f"v_add_f32 v{vT1}, v{SD+4}, v{SD+5}"); A(f"v_add_f32 v{vT2}, v{SD+6}, v{SD+7}")
    A(f"v_add_f32 v{SM}, v{SM}, v{vT0}"); A(f"v_add_f32 v{vT1}, v{vT1}, v{vT2}"); A(f"v_add_f32 v{SM}, v{SM}, v{vT1}")
    A(f"v_and_b32 v{vT0}, 3, v{vN}"); A(f"v_mul_u32_u24 v{vT1}, 320, v{vT0}"); A(f"v_lshl_add_u32 v{vT1}, v{vSLAB}, 4, v{vT1}")
    A(f"v_and_b32 v{vT2}, 12, v{vN}"); A(f"v_lshl_add_u32 v{vT1}, v{vT2}, 4, v{vT1}")
    A(f"s_mul_i32 s{t1}, s{sWID}, 1280"); A(f"s_add_u32 s{t1}, s{t1}, {L_P}"); A(f"v_add_u32 v{vT1}, s{t1}, v{vT1}")
    A(f"ds_write_b128 v{vT1}, {R(SP,4)}")
    dpp_op("v_add_f32", SM, "row_ror:4"); dpp_op("v_add_f32", SM, "row_ror:8")
    xsum_slabs(SM, vT2)
    A(f"s_lshl_b32 s{t1}, s{sWID}, 2"); A(f"s_add_u32 s{t1}, s{t1}, {L_ST}"); A(f"v_lshl_add_u32 v{vT1}, v{vT0}, 4, s{t1}")
    A(f"s_lshl_b32 s{t1}, s{sWID}, 4"); A(f"s_add_u32 s{t1}, s{t1}, {L_MW}"); A(f"v_lshl_add_u32 v{vT2}, v{vT0}, 2, s{t1}")
    A(f"ds_write_b32 v{vT1}, v{MX}"); A(f"ds_write_b32 v{vT1}, v{SM} offset:64"); A(f"ds_write_b32 v{vT2}, v{MX}")
    stamp(5)
    C("g/u check + FFN hidden activations")
    AH = 218
    A(f"v_mov_b32 v{AH}, 0"); A(f"v_mov_b32 v{AH+1}, 0")
    A(f"s_cmp_lt_i32 s{sJB}, 0"); A("s_cbranch_scc1 L_noffn")
    A(f"s_mov_b32 s{sSPIN}, 0")
    lab("L_gupoll")
    A("s_waitcnt vmcnt(0)")
    for k in range(4): A(f"v_bitop3_b32 v{GU+4*k+1}, v{GU+4*k+1}, v{GU+4*k+3}, s{sTAG} bitop3:0x7e")
    A(f"v_or3_b32 v{GU+1}, v{GU+1}, v{GU+5}, v{GU+9}"); A(f"v_or_b32 v{GU+1}, v{GU+1}, v{GU+13}")
    A(f"v_cmp_ne_u32 vcc, 0, v{GU+1}")
    A("s_cbranch_vccz L_guok")
    A(f"s_add_u32 s{sSPIN}, s{sSPIN}, 1"); A(f"s_cmp_lt_u32 s{sSPIN}, {SPIN_MAX}"); A("s_cbranch_scc0 L_guok")
    gu_loads()
    A("s_branch L_gupoll")
    lab("L_guok")
    vals = [GU + 2*i for i in range(8)]
    for ctl in ("quad_perm:[1,0,3,2]", "quad_perm:[2,3,0,1]"):
        for v in vals: A(f"v_add_f32_dpp v{v}, v{v}, v{v} {ctl} {DPP}")
    for v in vals: A(f"v_cvt_pk_bf16_f32 v{v}, v{v}, v{v}")
    for v in vals: A(f"v_and_b32 v{v}, 0xffff0000, v{v}")
    A(f"s_mov_b32 s{t2}, {hex(f2u(-1.4426950408889634))}")
    for i in range(4): A(f"v_mul_f32 v{vals[i]+1}, s{t2}, v{vals[i]}")
    for i in range(4): A(f"v_exp_f32 v{vals[i]+1}, v{vals[i]+1}")
    nop(1)
    for i in range(4): A(f"v_add_f32 v{vals[i]+1}, 1.0, v{vals[i]+1}")
    for i in range(4): A(f"v_rcp_f32 v{vals[i]+1}, v{vals[i]+1}")
    nop(1)
    for i in range(4): A(f"v_mul_f32 v{vals[i]}, v{vals[i]}, v{vals[i]+1}")
    for i in range(4): A(f"v_cvt_pk_bf16_f32 v{vals[i]}, v{vals[i]}, v{vals[i]}")
    for i in range(4): A(f"v_and_b32 v{vals[i]}, 0xffff0000, v{vals[i]}")
    for i in range(4): A(f"v_mul_f32 v{vals[i]}, v{vals[i]}, v{vals[4+i]}")
    A(f"v_cvt_pk_bf16_f32 v{AH}, v{vals[0]}, v{vals[1]}"); A(f"v_cvt_pk_bf16_f32 v{AH+1}, v{vals[2]}, v{vals[3]}")
    lab("L_noffn")
    C("precompute tail addresses")
    vWA, vDA, vSA, vOA, vXW, vXR2, vHA = 220, 221, 222, 223, 224, 225, 226
    sWOo, sWOo2, sDNo, sSTo, sOPo, sOPo2, sH2o, sRo = 50, 51, 52, 53, 54, 55, 56, 66
    A(f"v_lshlrev_b32 v{vT0}, 3, v{vN}")
    A(f"v_lshl_add_u32 v{vWA}, v{vSLAB}, 13, v{vT0}"); A(f"v_lshl_add_u32 v{vDA}, v{vSLAB}, 12, v{vT0}")
    A(f"s_lshl_b32 s{sWOo}, s{sH}, 17"); A(f"s_lshl_b32 s{t7}, s{sWID}, 15"); A(f"s_add_u32 s{sWOo}, s{sWOo}, s{t7}")
    A(f"s_lshl_b32 s{t7}, s{sCB}, 7"); A(f"s_add_u32 s{sWOo}, s{sWOo}, s{t7}"); A(f"s_add_u32 s{sWOo2}, s{sWOo}, 4096")
    A(f"s_max_i32 s{sDNo}, s{sJB}, 0"); A(f"s_lshl_b32 s{sDNo}, s{sDNo}, 16"); A(f"s_add_u32 s{sDNo}, s{sDNo}, s{t7}")
    A(f"s_lshl_b32 s{t7}, s{sWID}, 14"); A(f"s_add_u32 s{sDNo}, s{sDNo}, s{t7}")
    srd(rA, sWO, 0x400000)
    A(f"s_mov_b32 s{rB}, s{sDN}"); A(f"s_and_b32 s{rB+1}, s{sDN+1}, 0xffff"); A(f"s_mov_b32 s{rB+3}, 0x20000")
    A(f"s_cmp_lt_i32 s{sJB}, 0"); A(f"s_cselect_b32 s{rB+2}, 0, {1792*1024}")
    A(f"v_and_b32 v{vT0}, 7, v{vN}"); A(f"v_lshlrev_b32 v{vT0}, 4, v{vT0}"); A(f"v_lshl_add_u32 v{vSA}, v{vSLAB}, 7, v{vT0}")
    A(f"s_lshl_b32 s{sSTo}, s{sH}, 9"); A(f"s_add_u32 s{sSTo}, s{sSTo}, {WS_ST}")
    A(f"v_lshrrev_b32 v{vT0}, 2, v{vN}"); A(f"v_and_b32 v{vT1}, 3, v{vN}"); A(f"v_lshl_add_u32 v{vT0}, v{vT0}, 3, v{vT1}")
    A(f"v_lshlrev_b32 v{vT0}, 9, v{vT0}"); A(f"v_lshl_add_u32 v{vOA}, v{vSLAB}, 5, v{vT0}")
    A(f"s_lshl_b32 s{sOPo}, s{sH}, 14"); A(f"s_lshl_b32 s{t7}, s{sWID}, 7"); A(f"s_add_u32 s{sOPo}, s{sOPo}, s{t7}"); A(f"s_add_u32 s{sOPo}, s{sOPo}, {WS_OP}")
    A(f"s_lshl_b32 s{t7}, s{sWID}, 10"); A(f"s_add_u32 s{t7}, s{t7}, {L_X}"); A(f"v_lshl_add_u32 v{vXW}, v0, 4, s{t7}")
    A(f"s_lshl_b32 s{t7}, s{sWID}, 9"); A(f"s_add_u32 s{t7}, s{t7}, {L_X}"); A(f"v_lshl_add_u32 v{vXR2}, v0, 3, s{t7}")
    A(f"v_lshrrev_b32 v{vT0}, 5, v0"); A(f"v_lshlrev_b32 v{vT0}, 17, v{vT0}")
    A(f"v_bfe_u32 v{vT1}, v0, 2, 3"); A(f"v_lshl_add_u32 v{vT0}, v{vT1}, 11, v{vT0}")
    A(f"v_and_b32 v{vT1}, 3, v0"); A(f"v_lshl_add_u32 v{vHA}, v{vT1}, 4, v{vT0}")
    A(f"s_lshl_b32 s{sH2o}, s{sWID}, 18"); A(f"s_lshl_b32 s{t7}, s{sCB}, 14"); A(f"s_add_u32 s{sH2o}, s{sH2o}, s{t7}")
    A(f"s_lshl_b32 s{t7}, s{sH}, 6"); A(f"s_add_u32 s{sH2o}, s{sH2o}, s{t7}"); A(f"s_add_u32 s{sH2o}, s{sH2o}, {WS_H2}")
    A(f"s_lshl_b32 s{sRo}, s2, 11"); A(f"s_add_u32 s{sRo}, s{sRo}, {WS_H2}")
    A("s_waitcnt vmcnt(0) lgkmcnt(0)")
    A("s_barrier")
    stamp(6)
    A(f"s_cmp_eq_u32 s{sWID}, 3"); A("s_cbranch_scc0 L_nostat")
    C("WG-level softmax stats publish")
    A(f"v_and_b32 v{vT0}, 3, v0"); A(f"v_lshlrev_b32 v{vT1}, 4, v{vT0}"); A(f"v_add_u32 v{vT1}, {L_ST}, v{vT1}")
    A(f"ds_read_b128 {R(8,4)}, v{vT1}"); A(f"ds_read_b128 {R(12,4)}, v{vT1} offset:64")
    A(f"s_mov_b32 s{t7}, {hex(f2u(1.4426950408889634))}")
    A("s_waitcnt lgkmcnt(0)")
    A("v_max3_f32 v16, v8, v9, v10"); A("v_max_f32 v16, v16, v11")
    for i in range(4): A(f"v_sub_f32 v{8+i}, v{8+i}, v16")
    for i in range(4): A(f"v_mul_f32 v{8+i}, s{t7}, v{8+i}")
    for i in range(4): A(f"v_exp_f32 v{8+i}, v{8+i}")
    A(f"v_mov_b32 v17, s{sTAG}"); A(f"v_mov_b32 v19, s{sTAG}")
    A("v_mul_f32 v18, v8, v12")
    for i in range(1, 4): A(f"v_fmac_f32 v18, v{8+i}, v{12+i}")
    A(f"v_lshlrev_b32 v{vT1}, 9, v{vT0}")
    A(f"s_lshl_b32 s{t7}, s{sHKV}, 11"); A(f"s_lshl_b32 s{sSPIN}, s{sR}, 4"); A(f"s_add_u32 s{t7}, s{t7}, s{sSPIN}"); A(f"s_add_u32 s{t7}, s{t7}, {WS_ST}")
    A("s_mov_b64 exec, 15")
    A(f"buffer_store_dwordx4 v[16:19], v{vT1}, {S4(rWS)}, s{t7} offen sc1")
    A("s_mov_b64 exec, -1")
    lab("L_nostat")
    C("tail weight tiles")
    TW, TD = 24, 40
    for j in range(8): A(f"buffer_load_dwordx2 {R(TW+2*j,2)}, v{vWA}, {S4(rA)}, s{sWOo if j<4 else sWOo2} offen offset:{1024*(j&3)} nt")
    for j in range(4): A(f"buffer_load_dwordx2 {R(TD+2*j,2)}, v{vDA}, {S4(rB)}, s{sDNo} offen offset:{1024*j} nt")
    A(f"s_add_u32 s{sOPo2}, s{sOPo}, 2048")
    A("s_barrier")
    stamp(7)
    SG, OG = 48, 52
    BW, BD, DF, DD, ACC, vW = 72, 88, 96, 112, 144, 148
    A(f"buffer_load_dwordx4 {R(SG,4)}, v{vSA}, {S4(rWS)}, s{sSTo} offen sc1")
    A("s_waitcnt vmcnt(1)")
    order = [0, 2, 1, 3]
    for e in range(4):
        for i in range(4):
            pr = order[i]
            A(f"v_perm_b32 v{BW+4*e+i}, v{TW+2*(2*pr+1)+(e>>1)}, v{TW+2*(2*pr)+(e>>1)}, s{sHI if e&1 else sLO}")
    for e in range(4):
        for i in range(2):
            A(f"v_perm_b32 v{BD+2*e+i}, v{TD+2*(2*i+1)+(e>>1)}, v{TD+2*(2*i)+(e>>1)}, s{sHI if e&1 else sLO}")
    def o_loads(p):
        A(f"buffer_load_dwordx4 {R(OG+8*p,4)}, v{vOA}, {S4(rWS)}, s{sOPo if p==0 else sOPo2} offen sc1")
        A(f"buffer_load_dwordx4 {R(OG+8*p+4,4)}, v{vOA}, {S4(rWS)}, s{sOPo if p==0 else sOPo2} offen offset:16 sc1")
    o_loads(0); o_loads(1)
    for e in range(4): A(f"v_mfma_f32_16x16x16_bf16 {R(DF+4*e,4)}, {R(AH,2)}, {R(BD+2*e,2)}, 0")
    A(f"s_mov_b32 s{sSPIN}, 0")
    A("s_waitcnt vmcnt(4)")
    lab("L_stpoll")
    A(f"v_bitop3_b32 v{SG+1}, v{SG+1}, v{SG+3}, s{sTAG} bitop3:0x7e")
    A(f"v_cmp_ne_u32 vcc, 0, v{SG+1}")
    A("s_cbranch_vccz L_stok")
    A(f"s_add_u32 s{sSPIN}, s{sSPIN}, 1"); A(f"s_cmp_lt_u32 s{sSPIN}, {SPIN_MAX}"); A("s_cbranch_scc0 L_stok")
    A(f"buffer_load_dwordx4 {R(SG,4)}, v{vSA}, {S4(rWS)}, s{sSTo} offen sc1")
    A("s_waitcnt vmcnt(0)")
    A("s_branch L_stpoll")
    lab("L_stok")
    A(f"s_mov_b32 s{t7}, {hex(f2u(1.4426950408889634))}")
    A(f"v_mov_b32 v{SG+1}, v{SG}")
    dpp_op("v_max_f32", SG+1, "quad_perm:[1,0,3,2]"); dpp_op("v_max_f32", SG+1, "quad_perm:[2,3,0,1]"); dpp_op("v_max_f32", SG+1, "row_ror:4")
    A(f"v_sub_f32 v{SG}, v{SG}, v{SG+1}"); A(f"v_mul_f32 v{SG}, s{t7}, v{SG}"); A(f"v_exp_f32 v{SG}, v{SG}"); nop(1)
    A(f"v_mul_f32 v{SG+2}, v{SG}, v{SG+2}")
    dpp_op("v_add_f32", SG+2, "quad_perm:[1,0,3,2]"); dpp_op("v_add_f32", SG+2, "quad_perm:[2,3,0,1]"); dpp_op("v_add_f32", SG+2, "row_ror:4")
    A(f"v_rcp_f32 v{SG+2}, v{SG+2}"); nop(1)
    A(f"v_mul_f32 v{vW}, v{SG}, v{SG+2}")
    for e in range(4): A(f"v_mov_b32 v{ACC+e}, v{DF+4*e}")
    C("O partial gather (retry only the lanes still missing)")
    A(f"s_mov_b64 s[{mA}:{mA+1}], -1"); A(f"s_mov_b64 s[{mB}:{mB+1}], -1")
    A(f"s_mov_b32 s{sSPIN}, 0")
    lab("L_opoll")
    A("s_waitcnt vmcnt(0)")
    for p, mk in ((0, mA), (1, mB)):
        A(f"v_bitop3_b32 v{vT0}, v{OG+8*p+1}, v{OG+8*p+3}, s{sTAG} bitop3:0x7e")
        A(f"v_bitop3_b32 v{vT1}, v{OG+8*p+5}, v{OG+8*p+7}, s{sTAG} bitop3:0x7e")
        A(f"v_or_b32 v{vT0}, v{vT0}, v{vT1}")
        A(f"v_cmp_ne_u32 s[{mk}:{mk+1}], 0, v{vT0}")
    A(f"s_or_b64 s[{mC}:{mC+1}], s[{mA}:{mA+1}], s[{mB}:{mB+1}]")
    A("s_cbranch_scc0 L_ook")
    A(f"s_add_u32 s{sSPIN}, s{sSPIN}, 1"); A(f"s_cmp_lt_u32 s{sSPIN}, {SPIN_MAX}"); A("s_cbranch_scc0 L_ook")
    if o['sleep_o']: A(f"s_sleep {o['sleep_o']}")
    A(f"s_mov_b64 exec, s[{mA}:{mA+1}]"); A("s_cbranch_execz L_o1")
    o_loads(0)
    lab("L_o1")
    A(f"s_mov_b64 exec, s[{mB}:{mB+1}]"); A("s_cbranch_execz L_o2")
    o_loads(1)
    lab("L_o2")
    A("s_mov_b64 exec, -1")
    A("s_branch L_opoll")
    lab("L_ook")
    stamp(8)
    for p in range(2):
        A(f"v_mov_b32 v{OG+8*p+1}, v{OG+8*p+4}"); A(f"v_mov_b32 v{OG+8*p+3}, v{OG+8*p+6}")
    nop(1)
    seq = [(p, e) for p in range(2) for e in range(4)]
    def fm(idx):
        p, e = seq[idx]
        for r in range(4): A(f"v_fmac_f32_dpp v{ACC+e}, v{vW}, v{DD+16*p+4*e+r} row_newbcast:{4*p+r} {DPP}")
    for idx, (p, e) in enumerate(seq):
        A(f"v_mfma_f32_16x16x32_bf16 {R(DD+16*p+4*e,4)}, {R(OG+8*p,4)}, {R(BW+4*e,4)}, 0")
    nop(1)
    for p in range(2):
        for r in range(4):
            for e in range(4):
                A(f"v_fmac_f32_dpp v{ACC+e}, v{vW}, v{DD+16*p+4*e+r} row_newbcast:{4*p+r} {DPP}")
    A(f"ds_write_b128 v{vXW}, {R(ACC,4)}")
    A("s_waitcnt lgkmcnt(0)")
    A("s_barrier")
    A(f"s_cmp_ge_u32 s{sWID}, 2"); A("s_cbranch_scc1 L_final")
    for k in range(4): A(f"ds_read_b64 {R(8+2*k,2)}, v{vXR2} offset:{1024*k}")
    A(f"v_mov_b32 v17, s{sTAG}"); A(f"v_mov_b32 v19, s{sTAG}")
    A("s_waitcnt lgkmcnt(2)"); A("v_pk_add_f32 v[8:9], v[8:9], v[10:11]")
    A("s_waitcnt lgkmcnt(0)"); A("v_pk_add_f32 v[12:13], v[12:13], v[14:15]")
    A("v_add_f32 v16, v8, v12"); A("v_add_f32 v18, v9, v13")
    A(f"buffer_store_dwordx4 v[16:19], v{vHA}, {S4(rWS)}, s{sH2o} offen sc1")
    if stamps:
        stamp(9)
        A(f"s_cmp_eq_u32 s{sWID}, 0"); A("s_cbranch_scc1 L_wstamp0")
    A("s_endpgm")
    lab("L_final")
    A(f"s_cmp_eq_u32 s{sWID}, 2"); A("s_cbranch_scc0 L_end")
    C("final reduction over heads for 8 outputs")
    srd(rB, sOUT, 4096)
    A(f"v_lshlrev_b32 v{vT1}, 4, v0")
    A(f"s_mov_b32 s{sSPIN}, 0")
    d = o['delay_h2']
    if d: A(f"s_sleep {d}")
    lab("L_hpoll")
    A(f"buffer_load_dwordx4 v[8:11], v{vT1}, {S4(rWS)}, s{sRo} offen sc1")
    A(f"buffer_load_dwordx4 v[12:15], v{vT1}, {S4(rWS)}, s{sRo} offen offset:1024 sc1")
    A("s_waitcnt vmcnt(0)")
    A(f"v_bitop3_b32 v9, v9, v11, s{sTAG} bitop3:0x7e"); A(f"v_bitop3_b32 v13, v13, v15, s{sTAG} bitop3:0x7e")
    A("v_or_b32 v9, v9, v13")
    A("v_cmp_ne_u32 vcc, 0, v9")
    A("s_cbranch_vccz L_hok")
    if o['sleep_h2']: A(f"s_sleep {o['sleep_h2']}")
    A(f"s_add_u32 s{sSPIN}, s{sSPIN}, 1"); A(f"s_cmp_lt_u32 s{sSPIN}, {SPIN_MAX}"); A("s_cbranch_scc1 L_hpoll")
    lab("L_hok")
    A("v_add_f32 v8, v8, v12"); A("v_add_f32 v10, v10, v14")
    nop(1)
    for ctl in ("row_ror:4", "row_ror:8"):
        A(f"v_add_f32_dpp v8, v8, v8 {ctl} {DPP}"); A(f"v_add_f32_dpp v10, v10, v10 {ctl} {DPP}"); nop(1)
    for sw in ("v_permlane16_swap_b32", "v_permlane32_swap_b32"):
        A("v_mov_b32 v9, v8"); A("v_mov_b32 v11, v10"); nop(2)
        A(f"{sw} v8, v9"); A(f"{sw} v10, v11"); nop(1)
        A("v_add_f32 v8, v8, v9"); A("v_add_f32 v10, v10, v11")
    A(f"v_lshlrev_b32 v12, 16, v{vXR}"); A(f"v_and_b32 v13, 0xffff0000, v{vXR}")
    A("v_add_f32 v8, v8, v12"); A("v_add_f32 v10, v10, v13")
    A("v_cvt_pk_bf16_f32 v8, v8, v10")
    A(f"s_lshl_b32 s{t1}, s2, 4")
    A("s_mov_b64 exec, 15")
    A(f"buffer_store_dword v8, v{vXR+1}, {S4(rB)}, s{t1} offen")
    A("s_cmp_eq_u32 s2, 0"); A("s_cbranch_scc0 L_noep")
    C("advance the hand-off epoch (every workgroup has read it by now)")
    A("s_mov_b64 exec, 1")
    A(f"s_sub_u32 s{t1}, s{sTAG}, 0x7F4A7C15"); A(f"s_mul_i32 s{t1}, s{t1}, {hex(pow(0x9E3779B1, -1, 1<<32))}"); A(f"s_add_u32 s{t1}, s{t1}, 1")
    A(f"v_mov_b32 v9, s{t1}"); A("v_mov_b32 v10, 0")
    A(f"buffer_store_dword v9, v10, {S4(rWS)}, 0 offen offset:{WS_EPOCH} sc1")
    lab("L_noep")
    if stamps:
        A("s_mov_b64 exec, -1")
        stamp(10)
        A("s_waitcnt lgkmcnt(0)")
        A(f"s_add_u32 s{t2}, s{sWS}, 0x10000000"); A(f"s_addc_u32 s{t3}, s{sWS+1}, 0")
        A(f"s_mul_i32 s{t1}, s2, 128"); A(f"v_mov_b32 v6, s{t1}")
        A(f"v_mov_b32 v8, s{sST+20}"); A(f"v_mov_b32 v9, s{sST+21}")
        A(f"global_store_dwordx2 v6, v[8:9], s[{t2}:{t3}] offset:80")
        if stamps == 2:
            A("s_mov_b64 exec, 1"); A("v_mov_b32 v6, 0")
            A(f"global_atomic_umax v6, v8, s[{sDBG}:{sDBG+1}] offset:40")
    A("s_endpgm")
    if stamps:
        lab("L_wstamp0")
        A("s_waitcnt lgkmcnt(0)")
        A(f"s_add_u32 s{t2}, s{sWS}, 0x10000000"); A(f"s_addc_u32 s{t3}, s{sWS+1}, 0")
        A(f"s_mul_i32 s{t1}, s2, 128"); A(f"v_mov_b32 v6, s{t1}")
        for i in range(10):
            A(f"v_mov_b32 v8, s{sST+2*i}"); A(f"v_mov_b32 v9, s{sST+2*i+1}")
            A(f"global_store_dwordx2 v6, v[8:9], s[{t2}:{t3}] offset:{8*i}"); nop(2)
        if stamps == 2:
            A("s_mov_b64 exec, 1"); A("v_mov_b32 v6, 0")
            for i in range(10):
                A(f"v_mov_b32 v8, s{sST+2*i}")
                A(f"global_atomic_umax v6, v8, s[{sDBG}:{sDBG+1}] offset:{4*i}"); nop(2)
            for k, i in enumerate((0, 6, 7)):
                A(f"v_not_b32 v8, s{sST+2*i}")
                A(f"global_atomic_umax v6, v8, s[{sDBG}:{sDBG+1}] offset:{44+4*k}"); nop(2)
        A("s_endpgm")

    L.append(".p2align 6")
    lab("L_att")
    C("---- attention waves 4..7")
    sAW, sBASE, sBLK, sLB = t0, t1, t2, t3
    VV, PA, PT, XX, YY = 128, 64, 24, 8, 12
    A(f"s_sub_u32 s{sAW}, s{sWID}, 4")
    A(f"s_lshr_b32 s{sBASE}, s{sR}, 3"); A(f"s_lshl_b32 s{sBASE}, s{sBASE}, 3"); A(f"s_add_u32 s{sBASE}, s{sBASE}, s{sHKV}"); A(f"s_lshl_b32 s{sBASE}, s{sBASE}, 22")
    A(f"s_and_b32 s{t4}, s{sR}, 7"); A(f"s_lshl_b32 s{t4}, s{t4}, 17"); A(f"s_add_u32 s{sBASE}, s{sBASE}, s{t4}"); A(f"s_add_u32 s{sBASE}, s{sBASE}, {12288*256}")
    A(f"s_add_u32 s{sBLK}, s{sR}, s{sAW}")
    if o['rotx']:
        A(f"s_mul_i32 s{t4}, s{sHKV}, {o['rotx']}"); A(f"s_add_u32 s{sBLK}, s{sBLK}, s{t4}")
    A(f"s_lshl_b32 s{sBLK}, s{sBLK}, 12")
    A(f"s_lshl_b32 s{sLB}, s{sAW}, 15")
    A(f"v_lshlrev_b32 v4, 2, v{vSLAB}"); A(f"v_xor_b32 v4, v4, v{vN}"); A(f"v_lshlrev_b32 v5, 8, v{vSLAB}")
    for a in range(4):
        A(f"v_xor_b32 v{16+a}, {a}, v4"); A(f"v_lshl_add_u32 v{16+a}, v{16+a}, 4, v5")
    A("v_lshlrev_b32 v20, 4, v0")
    A(f"s_lshl_b32 s{t4}, s{sAW}, 2"); A(f"s_add_u32 s{t4}, s{t4}, {L_F}"); A(f"v_mov_b32 v21, s{t4}"); A("v_mov_b32 v22, 1")
    A("s_waitcnt lgkmcnt(0)")
    srd(rA, sK, 0x8000000); srd(rB, sV, 0x8000000)
    load_epoch()
    A(f"s_mov_b32 s{t5}, s{sBLK}"); A(f"s_mov_b32 m0, s{sLB}"); A(f"s_add_u32 s{t6}, s{sLB}, 32768")
    A("s_barrier")
    lab("L_kloop")
    A(f"s_and_b32 s{t4}, s{t5}, 0x1ffff"); A(f"s_add_u32 s{t4}, s{t4}, s{sBASE}")
    for a in range(4): A(f"buffer_load_dwordx4 v{16+a}, {S4(rA)}, s{t4} offen offset:{1024*a} nt lds")
    A(f"s_add_u32 s{t5}, s{t5}, 16384"); A("s_add_u32 m0, m0, 4096")
    A(f"s_cmp_lt_u32 m0, s{t6}"); A("s_cbranch_scc1 L_kloop")
    for i in range(32):
        if i % 4 == 0:
            A(f"s_and_b32 s{t4}, s{sBLK}, 0x1ffff"); A(f"s_add_u32 s{t4}, s{t4}, s{sBASE}"); A(f"s_add_u32 s{sBLK}, s{sBLK}, 16384")
        A(f"buffer_load_dwordx4 {R(VV+4*i,4)}, v20, {S4(rB)}, s{t4} offen offset:{1024*(i&3)} nt")
        if i + 1 == o['kwait']:
            A(f"s_waitcnt vmcnt({o['kwait']})"); A("ds_write_b32 v21, v22")
    srd(rWS, sWS, WS_END)
    A(f"v_and_b32 v4, 3, v{vN}"); A("v_mul_u32_u24 v4, 320, v4"); A(f"v_lshl_add_u32 v4, v{vSLAB}, 4, v4")
    A(f"s_mul_i32 s{t4}, s{sAW}, 1280"); A(f"s_add_u32 s{t4}, s{t4}, {L_P}"); A(f"v_add_u32 v4, s{t4}, v4")
    A(f"v_lshrrev_b32 v5, 2, v{vN}"); A(f"v_mov_b32 v6, {L_Z}")
    for g in range(4):
        A(f"v_cmp_eq_u32 vcc, {g}, v5"); nop(2); A(f"v_cndmask_b32 v{16+g}, v6, v4, vcc")
    A(f"v_mov_b32 v4, {L_MW}")
    A(f"s_lshl_b32 s{t4}, s{sAW}, 4"); A(f"s_add_u32 s{t4}, s{t4}, {L_MW}"); A(f"v_mov_b32 v5, s{t4}")
    A(f"s_lshl_b32 s{t4}, s{sAW}, 11"); A(f"s_add_u32 s{t4}, s{t4}, {L_O}"); A(f"v_lshl_add_u32 v21, v0, 3, s{t4}")
    A(f"s_lshl_b32 s{t4}, s{sAW}, 9"); A(f"s_add_u32 s{t4}, s{t4}, {L_O}"); A(f"v_lshl_add_u32 v22, v0, 3, s{t4}")
    A(f"v_lshl_add_u32 v23, v{vN}, 2, v{vSLAB}"); A("v_lshlrev_b32 v23, 3, v23")
    A(f"s_lshl_b32 s{t5}, s{sHKV}, 2"); A(f"s_add_u32 s{t5}, s{t5}, s{sAW}"); A(f"s_lshl_b32 s{t5}, s{t5}, 14")
    A(f"s_lshl_b32 s{t4}, s{sR}, 9"); A(f"s_add_u32 s{t5}, s{t5}, s{t4}"); A(f"s_add_u32 s{t5}, s{t5}, {WS_OP}")
    A("s_waitcnt lgkmcnt(0)")
    make_tag()
    A("s_barrier")
    for u in range(4):
        for g in range(4): A(f"ds_read_b128 {R(PA+16*u+4*g,4)}, v{16+g} offset:{64*u}")
        if u == 1: A("s_waitcnt lgkmcnt(4)")
    FS = 56
    A("s_waitcnt lgkmcnt(6)")
    for k in range(4): A(f"ds_read_b128 {R(PT+4*k,4)}, v4 offset:{16*k}")
    A(f"ds_read_b128 {R(FS,4)}, v5")
    A(f"s_mov_b32 s{t7}, {hex(f2u(1.4426950408889634))}")
    A("s_waitcnt lgkmcnt(0)")
    for h in range(4): A(f"v_max3_f32 v{PT+h}, v{PT+h}, v{PT+4+h}, v{PT+8+h}")
    for h in range(4): A(f"v_max_f32 v{PT+h}, v{PT+h}, v{PT+12+h}")
    for h in range(4): A(f"v_sub_f32 v{FS+h}, v{FS+h}, v{PT+h}")
    for h in range(4): A(f"v_mul_f32 v{FS+h}, s{t7}, v{FS+h}")
    for h in range(4): A(f"v_exp_f32 v{FS+h}, v{FS+h}")
    C("P.V")
    for u in range(4):
        A(f"s_waitcnt vmcnt({24-8*u})")
        def perms(e):
            for i in range(4):
                A(f"v_perm_b32 v{PT+4*e+i}, v{VV+4*(8*u+2*i+1)+(e>>1)}, v{VV+4*(8*u+2*i)+(e>>1)}, s{sHI if e&1 else sLO}")
        def mf(e):
            acc = YY if e & 1 else XX
            first = (u == 0 and e < 2)
            A(f"v_mfma_f32_16x16x32_bf16 {R(acc,4)}, {R(PA+16*u+4*(e>>1),4)}, {R(PT+4*e,4)}, {'0' if first else R(acc,4)}")
        perms(0)
        for e in range(1, 8):
            perms(e); mf(e-1)
        nop(2)
        mf(7)
    nop(7)
    for h in range(4):
        A(f"v_mul_f32 v{PT+2*h}, v{XX+h}, v{FS+h}")
    for h in range(4):
        A(f"v_mul_f32 v{PT+2*h+1}, v{YY+h}, v{FS+h}")
    for h in range(4): A(f"ds_write_b64 v21, {R(PT+2*h,2)} offset:{512*h}")
    A("s_waitcnt lgkmcnt(0)")
    A("s_barrier")
    for k in range(4): A(f"ds_read_b64 {R(PT+8+2*k,2)}, v22 offset:{2048*k}")
    A(f"v_mov_b32 v{PT+1}, s{sTAG}")
    A("s_waitcnt lgkmcnt(2)"); A(f"v_pk_add_f32 {R(PT+8,2)}, {R(PT+8,2)}, {R(PT+10,2)}")
    A("s_waitcnt lgkmcnt(0)"); A(f"v_pk_add_f32 {R(PT+12,2)}, {R(PT+12,2)}, {R(PT+14,2)}")
    A(f"v_pk_add_f32 {R(PT+8,2)}, {R(PT+8,2)}, {R(PT+12,2)}")
    A(f"v_cvt_pk_bf16_f32 v{PT}, v{PT+8}, v{PT+9}")
    A(f"buffer_store_dwordx2 {R(PT,2)}, v23, {S4(rWS)}, s{t5} offen sc1")
    lab("L_end")
    A("s_endpgm")
    lab("L_codeend")
    L.append('.section .rodata,"a"'); L.append(".p2align 6"); L.append(f".amdhsa_kernel {NAME}_kernel")
    for s in ("next_free_vgpr 256", "next_free_sgpr 96", "accum_offset 256", "group_segment_fixed_size 0", "kernarg_size 96",
              "user_sgpr_count 2", "user_sgpr_kernarg_segment_ptr 1", "system_sgpr_workgroup_id_x 1",
              "float_denorm_mode_32 3", "float_denorm_mode_16_64 3"):
        L.append("  .amdhsa_" + s)
    L.append(".end_amdhsa_kernel")
    return "\n".join(L) + "\n"

if __name__ == "__main__":
    import json
    out = sys.argv[1]
    st = int(sys.argv[2]) if len(sys.argv) > 2 else 0
    opts = json.loads(sys.argv[3]) if len(sys.argv) > 3 else None
    open(out, "w").write(gen(st, opts))
```

```python
import sys, struct
NAME = "parallel_sum__sliding_block_cached__swiglu_ffn__decode"

def f2u(x): return struct.unpack("<I", struct.pack("<f", x))[0]

WS_EPOCH = 0
WS_QP = 0x1000
WS_GU = WS_QP + 512*1024
WS_ST = WS_GU + 448*1024
WS_OP = WS_ST + 32*1024
WS_H2 = WS_OP + 512*1024
WS_END = WS_H2 + 512*1024
L_K = 0
L_Q = 131072
L_Z = L_Q + 1280
L_F = L_Z + 256
L_ST = L_F + 64
L_MW = L_ST + 128
L_P = L_MW + 64
L_O = L_P + 4*1280
L_X = L_O + 8192
L_END = L_X + 4096
assert L_P % 16 == 0 and L_O % 16 == 0 and L_X % 16 == 0

SPIN_MAX = 1 << 16

def gen(stamps=False, opts=None):
    o = dict(kwait=12, rotx=0, sleep_q=1, sleep_o=1, sleep_h2=1, delay_h2=0, delay_o=0)
    if opts: o.update(opts)
    KVF = o.get('kvf', ' nt')
    L = []
    def A(s): L.append("    " + s)
    def lab(s): L.append(s + ":")
    def C(s): L.append("    ; " + s)
    def nop(n): A(f"s_nop {n-1}")
    DPP = "row_mask:0xf bank_mask:0xf"
    sX, sK, sV, sWQ, sWO, sG, sU, sDN, sOUT, sDBG, sWS = 4, 6, 8, 10, 12, 16, 18, 20, 22, 24, 26
    sWID, sHKV, sR, sTAG = 28, 29, 30, 31
    rWS, rA, rB = 32, 36, 40
    sLO, sHI = 44, 45
    sSPIN = 46
    sH, sCB, sJB = 47, 48, 49
    t0, t1, t2, t3, t4, t5, t6, t7 = 50, 51, 52, 53, 54, 55, 56, 57
    mA, mB, mC = 58, 60, 62
    sST = 70
    nstamp = [0]
    def stamp(i):
        if stamps: A(f"s_memrealtime s[{sST+2*i}:{sST+2*i+1}]")
    def srd(r, p, nrec):
        A(f"s_mov_b32 s{r}, s{p}"); A(f"s_and_b32 s{r+1}, s{p+1}, 0xffff")
        A(f"s_mov_b32 s{r+2}, {nrec}"); A(f"s_mov_b32 s{r+3}, 0x20000")
    def R(a, n): return f"v[{a}:{a+n-1}]"
    def S4(r): return f"s[{r}:{r+3}]"
    vLANE, vSLAB, vN = 0, 2, 3
    def load_epoch():
        if o.get('wsoff'):
            A(f"s_add_u32 s{sWS}, s{sWS}, {o['wsoff']}"); A(f"s_addc_u32 s{sWS+1}, s{sWS+1}, 0")
        A(f"s_load_dword s{sTAG}, s[{sWS}:{sWS+1}], {WS_EPOCH}")
    def make_tag():
        A(f"s_mul_i32 s{sTAG}, s{sTAG}, 0x9E3779B1"); A(f"s_add_u32 s{sTAG}, s{sTAG}, 0x7F4A7C15")
    def xsum_slabs(v, tmp, op="v_add_f32"):
        A(f"v_mov_b32 v{tmp}, v{v}"); nop(2)
        A(f"v_permlane16_swap_b32 v{v}, v{tmp}"); nop(1)
        A(f"{op} v{v}, v{v}, v{tmp}")
        A(f"v_mov_b32 v{tmp}, v{v}"); nop(2)
        A(f"v_permlane32_swap_b32 v{v}, v{tmp}"); nop(1)
        A(f"{op} v{v}, v{v}, v{tmp}")
    def dpp_op(op, v, ctl):
        nop(2); A(f"{op}_dpp v{v}, v{v}, v{v} {ctl} {DPP}")
    def bf16r(v):
        A(f"v_cvt_pk_bf16_f32 v{v}, v{v}, v{v}"); A(f"v_and_b32 v{v}, 0xffff0000, v{v}")
    def lds_spin(name, vaddr, vtmp, mask):
        A(f"s_mov_b32 s{sSPIN}, 0")
        lab(f"L_spin_{name}")
        A(f"ds_read_b32 v{vtmp}, v{vaddr}")
        A("s_waitcnt lgkmcnt(0)")
        A(f"v_cmp_ne_u32 vcc, 0, v{vtmp}")
        A(f"s_and_b32 s{t7}, vcc_lo, {mask}")
        A(f"s_cmp_eq_u32 s{t7}, {mask}")
        A(f"s_cbranch_scc1 L_spin_{name}_done")
        A("s_sleep 2")
        A(f"s_add_u32 s{sSPIN}, s{sSPIN}, 1")
        A(f"s_cmp_lt_u32 s{sSPIN}, {SPIN_MAX*4}")
        A(f"s_cbranch_scc1 L_spin_{name}")
        lab(f"L_spin_{name}_done")

    L.append(f"; @launch grid=(256,1,1) block=(512,1,1) lds={L_END}")
    L.append('.amdgcn_target "amdgcn-amd-amdhsa--gfx950"')
    L.append(".text"); L.append(f".globl {NAME}_kernel"); L.append(".p2align 8"); L.append(f".type {NAME}_kernel,@function")
    lab(f"{NAME}_kernel")
    A("s_cmp_ge_u32 s2, 256"); A("s_cbranch_scc1 L_end")
    A("s_load_dwordx16 s[4:19], s[0:1], 0")
    A("s_load_dwordx8 s[20:27], s[0:1], 64")
    if stamps:
        for i in range(1, 12): A(f"s_mov_b64 s[{sST+2*i}:{sST+2*i+1}], 0")
    stamp(0)
    if o.get('calib'): A("s_memrealtime s[94:95]")
    A("v_lshrrev_b32 v1, 6, v0")
    A("v_and_b32 v0, 63, v0")
    A(f"s_and_b32 s{sHKV}, s2, 7")
    A(f"v_readfirstlane_b32 s{sWID}, v1")
    A(f"s_lshr_b32 s{sR}, s2, 3")
    A(f"v_lshrrev_b32 v{vSLAB}, 4, v0")
    A(f"v_and_b32 v{vN}, 15, v0")
    A(f"s_mov_b32 s{sLO}, 0x05040100"); A(f"s_mov_b32 s{sHI}, 0x07060302")
    A(f"s_cmp_ge_u32 s{sWID}, 4"); A("s_cbranch_scc1 L_att")
    A(f"s_cmp_ge_u32 s{sWID}, 2"); A("s_cbranch_scc1 L_aux")

    C("---- service waves 0,1: projection tile (wave0: wq, wave1: gate/up)")
    sSTR, sTOFF, sPOFF, sPPI, sKQ = t0, t1, t2, t3, t4
    A(f"s_cmp_eq_u32 s{sWID}, 0"); A("s_cbranch_scc1 L_pq")
    A(f"s_cmp_ge_u32 s{sR}, 28"); A("s_cbranch_scc1 L_aux")
    A(f"s_movk_i32 s{sSTR}, 3584"); A(f"s_lshr_b32 s{sKQ}, s{sHKV}, 1")
    A(f"s_mul_i32 s{sTOFF}, s{sKQ}, {128*3584}"); A(f"s_lshl_b32 s{t5}, s{sR}, 7"); A(f"s_add_u32 s{sTOFF}, s{sTOFF}, s{t5}")
    A(f"s_and_b32 s{t6}, s{sHKV}, 1"); A(f"s_lshl_b32 s{t5}, s{t6}, 2"); A(f"s_add_u32 s{t5}, s{t5}, s{sKQ}")
    A(f"s_mul_i32 s{sPOFF}, s{t5}, {4*14336}"); A(f"s_lshl_b32 s{t5}, s{sR}, 9"); A(f"s_add_u32 s{sPOFF}, s{sPOFF}, s{t5}")
    A(f"s_add_u32 s{sPOFF}, s{sPOFF}, {WS_GU}"); A(f"s_movk_i32 s{sPPI}, 14336")
    A(f"s_mov_b32 s{rA+2}, {512*3584}")
    A("s_waitcnt lgkmcnt(0)")
    A(f"s_cmp_eq_u32 s{t6}, 0")
    A(f"s_cselect_b32 s{rA}, s{sG}, s{sU}"); A(f"s_cselect_b32 s{rA+1}, s{sG+1}, s{sU+1}")
    A("s_branch L_proj")
    lab("L_pq")
    A(f"s_movk_i32 s{sSTR}, 8192"); A(f"s_and_b32 s{sKQ}, s{sR}, 3")
    A(f"s_lshr_b32 s{t5}, s{sR}, 2"); A(f"s_lshl_b32 s{t6}, s{sHKV}, 3"); A(f"s_add_u32 s{t5}, s{t5}, s{t6}")
    A(f"s_lshl_b32 s{sTOFF}, s{sKQ}, 20"); A(f"s_lshl_b32 s{t6}, s{t5}, 7"); A(f"s_add_u32 s{sTOFF}, s{sTOFF}, s{t6}")
    A(f"s_lshl_b32 s{sPOFF}, s{sKQ}, 17"); A(f"s_lshl_b32 s{t6}, s{t5}, 9"); A(f"s_add_u32 s{sPOFF}, s{sPOFF}, s{t6}")
    A(f"s_add_u32 s{sPOFF}, s{sPOFF}, {WS_QP}"); A(f"s_mov_b32 s{sPPI}, 32768")
    A(f"s_mov_b32 s{rA+2}, 0x400000")
    A("s_waitcnt lgkmcnt(0)")
    A(f"s_mov_b32 s{rA}, s{sWQ}"); A(f"s_mov_b32 s{rA+1}, s{sWQ+1}")
    lab("L_proj")
    A(f"s_and_b32 s{rA+1}, s{rA+1}, 0xffff"); A(f"s_mov_b32 s{rA+3}, 0x20000")
    srd(rB, sX, 4096)
    XS, XA, T, F = 8, 24, 40, 104
    vA0, vA1, vA2 = 4, 5, 6
    A(f"v_lshrrev_b32 v{vA2}, 2, v{vN}"); A(f"v_lshlrev_b32 v{vA2}, 10, v{vA2}")
    A(f"v_and_b32 v{vA0}, 3, v{vN}"); A(f"v_lshl_add_u32 v{vA0}, v{vSLAB}, 2, v{vA0}"); A(f"v_lshl_add_u32 v{vA0}, v{vA0}, 6, v{vA2}")
    A(f"v_lshl_add_u32 v{vA1}, v{vSLAB}, 4, v{vA2}")
    A(f"s_lshl_b32 s{t5}, s{sKQ}, 8")
    for j in range(4): A(f"buffer_load_dwordx4 {R(XS+4*j,4)}, v{vA0}, {S4(rB)}, 0 offen offset:{16*j}")
    for j in range(4): A(f"buffer_load_dwordx4 {R(XA+4*j,4)}, v{vA1}, {S4(rB)}, s{t5} offen offset:{64*j}")
    A(f"s_lshl_b32 s{t5}, s{sSTR}, 3")
    A(f"v_mul_lo_u32 v{vA2}, v{vSLAB}, s{t5}"); A(f"v_lshl_add_u32 v{vA2}, v{vN}, 3, v{vA2}")
    A(f"s_mul_i32 s{t6}, s{sSTR}, 25")
    for st in range(4):
        for j in range(8):
            i = 8*st + j
            A(f"buffer_load_dwordx2 {R(T+2*i,2)}, v{vA2}, {S4(rA)}, s{sTOFF} offen nt")
            if i < 31: A(f"s_add_u32 s{sTOFF}, s{sTOFF}, s{sSTR if j < 7 else t6}")
    load_epoch()
    A("s_barrier")
    C("layernorm")
    A("s_waitcnt vmcnt(36)")
    for i in range(16):
        A(f"v_lshlrev_b32 v{F+2*i}, 16, v{XS+i}"); A(f"v_and_b32 v{F+2*i+1}, 0xffff0000, v{XS+i}")
    AC = XS
    A(f"v_pk_add_f32 {R(AC,2)}, {R(F,2)}, {R(F+2,2)}"); A(f"v_pk_add_f32 {R(AC+2,2)}, {R(F+4,2)}, {R(F+6,2)}")
    for i in range(4, 16, 2):
        A(f"v_pk_add_f32 {R(AC,2)}, {R(AC,2)}, {R(F+2*i,2)}"); A(f"v_pk_add_f32 {R(AC+2,2)}, {R(AC+2,2)}, {R(F+2*i+2,2)}")
    A(f"v_pk_add_f32 {R(AC,2)}, {R(AC,2)}, {R(AC+2,2)}")
    MU, TM = XS+4, XS+6
    A(f"v_add_f32 v{MU}, v{AC}, v{AC+1}")
    dpp_op("v_add_f32", MU, "quad_perm:[1,0,3,2]"); dpp_op("v_add_f32", MU, "quad_perm:[2,3,0,1]")
    xsum_slabs(MU, TM)
    A(f"v_mul_f32 v{MU}, {hex(f2u(1/512))}, v{MU}"); A(f"v_mov_b32 v{MU+1}, v{MU}")
    for i in range(16): A(f"v_pk_add_f32 {R(F+2*i,2)}, {R(F+2*i,2)}, {R(MU,2)} neg_lo:[0,1] neg_hi:[0,1]")
    A(f"v_pk_mul_f32 {R(AC,2)}, {R(F,2)}, {R(F,2)}"); A(f"v_pk_mul_f32 {R(AC+2,2)}, {R(F+2,2)}, {R(F+2,2)}")
    for i in range(2, 16, 2):
        A(f"v_pk_fma_f32 {R(AC,2)}, {R(F+2*i,2)}, {R(F+2*i,2)}, {R(AC,2)}"); A(f"v_pk_fma_f32 {R(AC+2,2)}, {R(F+2*i+2,2)}, {R(F+2*i+2,2)}, {R(AC+2,2)}")
    A(f"v_pk_add_f32 {R(AC,2)}, {R(AC,2)}, {R(AC+2,2)}")
    VR = XS+8
    A(f"v_add_f32 v{VR}, v{AC}, v{AC+1}")
    dpp_op("v_add_f32", VR, "quad_perm:[1,0,3,2]"); dpp_op("v_add_f32", VR, "quad_perm:[2,3,0,1]")
    xsum_slabs(VR, TM)
    A(f"v_mul_f32 v{VR}, {hex(f2u(1/512))}, v{VR}")
    bf16r(MU); A(f"v_mov_b32 v{MU+1}, v{MU}")
    bf16r(VR)
    A(f"v_add_f32 v{VR}, {hex(f2u(1e-5))}, v{VR}"); bf16r(VR)
    A(f"v_sqrt_f32 v{VR}, v{VR}"); nop(1); bf16r(VR)
    RC = XS+10
    A(f"v_rcp_f32 v{RC}, v{VR}"); nop(1)
    A(f"v_fma_f32 v{TM}, -v{VR}, v{RC}, 1.0"); A(f"v_fma_f32 v{RC}, v{TM}, v{RC}, v{RC}"); A(f"v_mov_b32 v{RC+1}, v{RC}")
    A("s_waitcnt vmcnt(32)")
    for i in range(16):
        A(f"v_lshlrev_b32 v{F+2*i}, 16, v{XA+i}"); A(f"v_and_b32 v{F+2*i+1}, 0xffff0000, v{XA+i}")
    for i in range(16): A(f"v_pk_add_f32 {R(F+2*i,2)}, {R(F+2*i,2)}, {R(MU,2)} neg_lo:[0,1] neg_hi:[0,1]")
    for i in range(16): A(f"v_cvt_pk_bf16_f32 v{XA+i}, v{F+2*i}, v{F+2*i+1}")
    for i in range(16):
        A(f"v_lshlrev_b32 v{F+2*i}, 16, v{XA+i}"); A(f"v_and_b32 v{F+2*i+1}, 0xffff0000, v{XA+i}")
    for i in range(16): A(f"v_pk_mul_f32 {R(F+2*i,2)}, {R(F+2*i,2)}, {R(RC,2)}")
    for i in range(16): A(f"v_cvt_pk_bf16_f32 v{XA+i}, v{F+2*i}, v{F+2*i+1}")
    C("projection MFMAs")
    D = XS
    BB = F
    for st in range(4):
        A(f"s_waitcnt vmcnt({24-8*st})")
        bb = BB + 16*(st & 1)
        for e in range(4):
            for i in range(4):
                A(f"v_perm_b32 v{bb+4*e+i}, v{T+2*(8*st+2*i+1)+(e>>1)}, v{T+2*(8*st+2*i)+(e>>1)}, s{sHI if e&1 else sLO}")
        nop(2)
        for e in range(4):
            A(f"v_mfma_f32_16x16x32_bf16 {R(D+4*e,4)}, {R(XA+4*st,4)}, {R(bb+4*e,4)}, {'0' if st==0 else R(D+4*e,4)}")
    srd(rWS, sWS, WS_END)
    A("s_waitcnt lgkmcnt(0)")
    make_tag()
    A(f"v_mul_lo_u32 v{vA0}, v{vSLAB}, s{sPPI}"); A(f"v_lshl_add_u32 v{vA0}, v{vN}, 4, v{vA0}")
    nop(4)
    A(f"v_mov_b32 v{D+1}, s{sTAG}"); A(f"v_mov_b32 v{D+2}, v{D+4}"); A(f"v_mov_b32 v{D+3}, s{sTAG}")
    A(f"v_mov_b32 v{D+9}, s{sTAG}"); A(f"v_mov_b32 v{D+10}, v{D+12}"); A(f"v_mov_b32 v{D+11}, s{sTAG}")
    if not o.get('nopub'):
        A(f"buffer_store_dwordx4 {R(D,4)}, v{vA0}, {S4(rWS)}, s{sPOFF} offen sc1")
        A(f"buffer_store_dwordx4 {R(D+8,4)}, v{vA0}, {S4(rWS)}, s{sPOFF} offen offset:256 sc1")
    stamp(1)
    A(f"s_cmp_eq_u32 s{sWID}, 0"); A("s_cbranch_scc0 L_svc")
    A("s_waitcnt vmcnt(0)")
    A(f"v_mov_b32 v{vA0}, {L_F + 8*4}"); A(f"v_mov_b32 v{vA1}, 1")
    A(f"ds_write_b32 v{vA0}, v{vA1}")
    A("s_branch L_svc")

    lab("L_aux")
    C("---- waves 2,3 (and idle wave 1): LDS init, code prefetch, TLB warm")
    A(f"v_lshlrev_b32 v4, 2, v0"); A(f"v_add_u32 v4, {L_Z}, v4"); A("v_mov_b32 v5, 0")
    A("ds_write_b32 v4, v5"); A("ds_write_b32 v4, v5 offset:64")
    A(f"s_getpc_b64 s[{t0}:{t1}]")
    lab("L_pc")
    A(f"s_sub_u32 s{t0}, s{t0}, L_pc-{NAME}_kernel"); A(f"s_subb_u32 s{t1}, s{t1}, 0")
    A(f"s_and_b32 s{t2}, s{sWID}, 1"); A(f"s_lshl_b32 s{t2}, s{t2}, 12")
    A(f"v_lshl_add_u32 v6, v0, 6, s{t2}")
    A(f"v_min_u32 v6, L_codeend-{NAME}_kernel-4, v6")
    A(f"global_load_dword v7, v6, s[{t0}:{t1}]")
    A(f"v_add_u32 v6, 8192, v6"); A(f"v_min_u32 v6, L_codeend-{NAME}_kernel-4, v6")
    A(f"global_load_dword v7, v6, s[{t0}:{t1}]")
    A("s_waitcnt lgkmcnt(0)")
    load_epoch()
    srd(rWS, sWS, WS_END)
    A("s_barrier")
    A("s_waitcnt lgkmcnt(0)")
    make_tag()

    lab("L_svc")
    C("---- all service waves")
    vFL, vT0, vT1, vT2 = 4, 5, 6, 7
    A(f"s_lshr_b32 s{t0}, s{sR}, 3")
    A(f"s_lshl_b32 s{sH}, s{sHKV}, 2"); A(f"s_add_u32 s{sH}, s{sH}, s{t0}")
    A(f"s_and_b32 s{sCB}, s{sR}, 7")
    A(f"s_lshl_b32 s{sJB}, s{t0}, 3"); A(f"s_add_u32 s{sJB}, s{sJB}, s{sHKV}"); A(f"s_sub_u32 s{sJB}, s{sJB}, 4")
    vXR = 250
    srd(rB, sX, 4096)
    A(f"v_and_b32 v{vT0}, 3, v0"); A(f"v_lshlrev_b32 v{vXR+1}, 2, v{vT0}"); A(f"s_lshl_b32 s{t1}, s2, 4")
    A(f"buffer_load_dword v{vXR}, v{vXR+1}, {S4(rB)}, s{t1} offen")
    srd(rB, sOUT, 4096)
    A(f"buffer_load_dword v{vXR+2}, v{vXR+1}, {S4(rB)}, s{t1} offen")
    A(f"v_lshlrev_b32 v{vFL}, 2, v{vN}"); A(f"v_add_u32 v{vFL}, {L_F}, v{vFL}")
    lds_spin("go", vFL, vT0, "0x100")
    stamp(2)
    C("q gather: wave w <-> head w; lane l <-> d pair")
    QG = 8
    A(f"v_lshlrev_b32 v{vT1}, 4, v0")
    A(f"s_lshl_b32 s{t1}, s{t0}, 15"); A(f"s_lshl_b32 s{t2}, s{sHKV}, 12"); A(f"s_add_u32 s{t1}, s{t1}, s{t2}")
    A(f"s_lshl_b32 s{t2}, s{sWID}, 10"); A(f"s_add_u32 s{t1}, s{t1}, s{t2}"); A(f"s_add_u32 s{t1}, s{t1}, {WS_QP}")
    A(f"s_add_u32 s{t2}, s{t1}, {1<<17}"); A(f"s_add_u32 s{t3}, s{t1}, {2<<17}"); A(f"s_add_u32 s{t4}, s{t1}, {3<<17}")
    A(f"s_mov_b32 s{sSPIN}, 0")
    if o.get('noq'): A("s_branch L_qok")
    lab("L_qpoll")
    for k in range(4): A(f"buffer_load_dwordx4 {R(QG+4*k,4)}, v{vT1}, {S4(rWS)}, s{t1+k} offen sc1")
    A("s_waitcnt vmcnt(0)")
    for k in range(4): A(f"v_bitop3_b32 v{QG+4*k+1}, v{QG+4*k+1}, v{QG+4*k+3}, s{sTAG} bitop3:0x7e")
    A(f"v_or3_b32 v{QG+1}, v{QG+1}, v{QG+5}, v{QG+9}"); A(f"v_or_b32 v{QG+1}, v{QG+1}, v{QG+13}")
    A(f"v_cmp_ne_u32 vcc, 0, v{QG+1}")
    A("s_cbranch_vccz L_qok")
    A(f"s_sleep {o['sleep_q']}")
    A(f"s_add_u32 s{sSPIN}, s{sSPIN}, 1"); A(f"s_cmp_lt_u32 s{sSPIN}, {SPIN_MAX}"); A("s_cbranch_scc1 L_qpoll")
    lab("L_qok")
    A(f"v_add_f32 v{QG}, v{QG}, v{QG+4}"); A(f"v_add_f32 v{QG+2}, v{QG+2}, v{QG+6}")
    A(f"v_add_f32 v{QG+8}, v{QG+8}, v{QG+12}"); A(f"v_add_f32 v{QG+10}, v{QG+10}, v{QG+14}")
    A(f"v_add_f32 v{QG}, v{QG}, v{QG+8}"); A(f"v_add_f32 v{QG+2}, v{QG+2}, v{QG+10}")
    A(f"v_cvt_pk_bf16_f32 v{QG}, v{QG}, v{QG+2}")
    A(f"s_mul_i32 s{t1}, s{sWID}, 320"); A(f"s_add_u32 s{t1}, s{t1}, {L_Q}")
    A(f"v_and_b32 v{vT1}, 32, v0"); A(f"v_lshl_add_u32 v{vT1}, v{vN}, 1, v{vT1}")
    A(f"v_and_b32 v{vT2}, 1, v{vSLAB}"); A(f"v_add_u32 v{vT1}, v{vT1}, v{vT2}")
    A(f"v_lshl_add_u32 v{vT1}, v{vT1}, 2, s{t1}")
    A(f"ds_write_b32 v{vT1}, v{QG}")
    A(f"s_lshl_b32 s{t1}, s{sWID}, 2"); A(f"s_add_u32 s{t1}, s{t1}, {L_F+16}")
    A(f"v_mov_b32 v{vT1}, s{t1}"); A(f"v_mov_b32 v{vT2}, 1")
    A("s_waitcnt lgkmcnt(0)")
    A(f"ds_write_b32 v{vT1}, v{vT2}")
    stamp(3)
    C("issue g/u gather: lane (slab, b, kq): f = 64*jb + 16*w + 4*slab + (0..3)")
    GU = 200
    vGA = 216
    A(f"v_and_b32 v{vT0}, 3, v{vN}"); A(f"v_lshrrev_b32 v{vT1}, 2, v{vN}")
    A(f"v_lshl_add_u32 v{vT0}, v{vT0}, 2, v{vT1}")
    A(f"s_movk_i32 s{t1}, 14336"); A(f"v_mul_lo_u32 v{vT0}, v{vT0}, s{t1}")
    A(f"v_lshl_add_u32 v{vGA}, v{vSLAB}, 4, v{vT0}")
    sGO, sUO = 64, 65
    A(f"s_max_i32 s{t1}, s{sJB}, 0"); A(f"s_lshl_b32 s{sGO}, s{t1}, 9"); A(f"s_lshl_b32 s{t1}, s{sWID}, 6"); A(f"s_add_u32 s{sGO}, s{sGO}, s{t1}")
    A(f"s_add_u32 s{sGO}, s{sGO}, {WS_GU}"); A(f"s_add_u32 s{sUO}, s{sGO}, {16*14336}")
    def gu_loads():
        A(f"buffer_load_dwordx4 {R(GU,4)}, v{vGA}, {S4(rWS)}, s{sGO} offen sc1")
        A(f"buffer_load_dwordx4 {R(GU+4,4)}, v{vGA}, {S4(rWS)}, s{sGO} offen offset:256 sc1")
        A(f"buffer_load_dwordx4 {R(GU+8,4)}, v{vGA}, {S4(rWS)}, s{sUO} offen sc1")
        A(f"buffer_load_dwordx4 {R(GU+12,4)}, v{vGA}, {S4(rWS)}, s{sUO} offen offset:256 sc1")
    if not o.get('nogu'): gu_loads()
    C("wait K_w landed and all q heads")
    A(f"s_lshl_b32 s{t1}, 1, s{sWID}"); A(f"s_or_b32 s{t1}, s{t1}, 0xf0")
    lds_spin("kq", vFL, vT0, f"s{t1}")
    stamp(4)
    QM = 8
    KF = 72
    vQA = 140
    A(f"v_and_b32 v{vT0}, 3, v{vN}"); A(f"v_mul_u32_u24 v{vT0}, 320, v{vT0}"); A(f"v_lshl_add_u32 v{vT0}, v{vSLAB}, 4, v{vT0}")
    A(f"v_add_u32 v{vT1}, {L_Q}, v{vT0}")
    A(f"v_lshrrev_b32 v{vT2}, 2, v{vN}")
    A(f"v_mov_b32 v{vQA+4}, {L_Z}")
    for u in range(4):
        A(f"v_cmp_eq_u32 vcc, {u}, v{vT2}"); nop(2)
        A(f"v_cndmask_b32 v{vQA+u}, v{vQA+4}, v{vT1}, vcc")
    for u in range(4):
        for c in range(4): A(f"ds_read_b128 {R(QM+16*u+4*c,4)}, v{vQA+u} offset:{64*c}")
    vKA = 146
    A(f"v_and_b32 v{vT1}, 3, v{vN}"); A(f"v_lshl_add_u32 v{vT1}, v{vT1}, 2, v{vT2}"); A(f"v_lshlrev_b32 v{vT1}, 8, v{vT1}")
    A(f"s_lshl_b32 s{t1}, s{sWID}, 15"); A(f"v_add_u32 v{vT1}, s{t1}, v{vT1}")
    A(f"v_xor_b32 v{vT2}, v{vSLAB}, v{vN}")
    for c in range(4):
        A(f"v_xor_b32 v{vKA+c}, {4*c}, v{vT2}"); A(f"v_lshl_add_u32 v{vKA+c}, v{vKA+c}, 4, v{vT1}")
    SD = 152
    def kread(i):
        gi, c = i >> 2, i & 3
        A(f"ds_read_b128 {R(KF+4*(i&15),4)}, v{vKA+c} offset:{gi*4096}")
    A("s_waitcnt lgkmcnt(0)")
    for i in range(12): kread(i)
    for i in range(32):
        gi, c = i >> 2, i & 3
        u, jh = gi >> 1, gi & 1
        outstanding = min(32, i + 12) - i - 1
        A(f"s_waitcnt lgkmcnt({outstanding})")
        first = (u == 0 and c == 0)
        A(f"v_mfma_f32_16x16x32_bf16 {R(SD+4*jh,4)}, {R(KF+4*(i&15),4)}, {R(QM+16*u+4*c,4)}, {'0' if first else R(SD+4*jh,4)}")
        if i + 12 < 32: kread(i + 12)
    nop(8)
    C("scores: round to bf16, scale, round; softmax numerator")
    SP = 160
    A(f"s_mov_b32 s{t1}, {hex(f2u(128**-0.5))}"); A(f"s_mov_b32 s{t2}, {hex(f2u(1.4426950408889634))}")
    for i in range(4): A(f"v_cvt_pk_bf16_f32 v{SP+i}, v{SD+2*i}, v{SD+2*i+1}")
    for i in range(4):
        A(f"v_lshlrev_b32 v{SD+2*i}, 16, v{SP+i}"); A(f"v_and_b32 v{SD+2*i+1}, 0xffff0000, v{SP+i}")
    for i in range(8): A(f"v_mul_f32 v{SD+i}, s{t1}, v{SD+i}")
    for i in range(4): A(f"v_cvt_pk_bf16_f32 v{SP+i}, v{SD+2*i}, v{SD+2*i+1}")
    for i in range(4):
        A(f"v_lshlrev_b32 v{SD+2*i}, 16, v{SP+i}"); A(f"v_and_b32 v{SD+2*i+1}, 0xffff0000, v{SP+i}")
    MX, SM = 164, 165
    A(f"v_max3_f32 v{MX}, v{SD}, v{SD+1}, v{SD+2}"); A(f"v_max3_f32 v{SM}, v{SD+3}, v{SD+4}, v{SD+5}")
    A(f"v_max3_f32 v{MX}, v{MX}, v{SD+6}, v{SD+7}"); A(f"v_max_f32 v{MX}, v{MX}, v{SM}")
    dpp_op("v_max_f32", MX, "row_ror:4"); dpp_op("v_max_f32", MX, "row_ror:8")
    xsum_slabs(MX, vT0, "v_max_f32")
    for i in range(8): A(f"v_sub_f32 v{SD+i}, v{SD+i}, v{MX}")
    for i in range(8): A(f"v_mul_f32 v{SD+i}, s{t2}, v{SD+i}")
    for i in range(8): A(f"v_exp_f32 v{SD+i}, v{SD+i}")
    nop(1)
    for i in range(4): A(f"v_cvt_pk_bf16_f32 v{SP+i}, v{SD+2*i}, v{SD+2*i+1}")
    A(f"v_add_f32 v{SM}, v{SD}, v{SD+1}"); A(f"v_add_f32 v{vT0}, v{SD+2}, v{SD+3}")
    A(f"v_add_f32 v{vT1}, v{SD+4}, v{SD+5}"); A(f"v_add_f32 v{vT2}, v{SD+6}, v{SD+7}")
    A(f"v_add_f32 v{SM}, v{SM}, v{vT0}"); A(f"v_add_f32 v{vT1}, v{vT1}, v{vT2}"); A(f"v_add_f32 v{SM}, v{SM}, v{vT1}")
    A(f"v_and_b32 v{vT0}, 3, v{vN}"); A(f"v_mul_u32_u24 v{vT1}, 320, v{vT0}"); A(f"v_lshl_add_u32 v{vT1}, v{vSLAB}, 4, v{vT1}")
    A(f"v_and_b32 v{vT2}, 12, v{vN}"); A(f"v_lshl_add_u32 v{vT1}, v{vT2}, 4, v{vT1}")
    A(f"s_mul_i32 s{t1}, s{sWID}, 1280"); A(f"s_add_u32 s{t1}, s{t1}, {L_P}"); A(f"v_add_u32 v{vT1}, s{t1}, v{vT1}")
    A(f"ds_write_b128 v{vT1}, {R(SP,4)}")
    dpp_op("v_add_f32", SM, "row_ror:4"); dpp_op("v_add_f32", SM, "row_ror:8")
    xsum_slabs(SM, vT2)
    A(f"s_lshl_b32 s{t1}, s{sWID}, 2"); A(f"s_add_u32 s{t1}, s{t1}, {L_ST}"); A(f"v_lshl_add_u32 v{vT1}, v{vT0}, 4, s{t1}")
    A(f"s_lshl_b32 s{t1}, s{sWID}, 4"); A(f"s_add_u32 s{t1}, s{t1}, {L_MW}"); A(f"v_lshl_add_u32 v{vT2}, v{vT0}, 2, s{t1}")
    A(f"ds_write_b32 v{vT1}, v{MX}"); A(f"ds_write_b32 v{vT1}, v{SM} offset:64"); A(f"ds_write_b32 v{vT2}, v{MX}")
    stamp(5)
    C("g/u check + FFN hidden activations")
    AH = 218
    A(f"v_mov_b32 v{AH}, 0"); A(f"v_mov_b32 v{AH+1}, 0")
    if o.get('nogu'): A("s_branch L_noffn")
    A(f"s_cmp_lt_i32 s{sJB}, 0"); A("s_cbranch_scc1 L_noffn")
    A(f"s_mov_b32 s{sSPIN}, 0")
    lab("L_gupoll")
    A("s_waitcnt vmcnt(0)")
    for k in range(4): A(f"v_bitop3_b32 v{GU+4*k+1}, v{GU+4*k+1}, v{GU+4*k+3}, s{sTAG} bitop3:0x7e")
    A(f"v_or3_b32 v{GU+1}, v{GU+1}, v{GU+5}, v{GU+9}"); A(f"v_or_b32 v{GU+1}, v{GU+1}, v{GU+13}")
    A(f"v_cmp_ne_u32 vcc, 0, v{GU+1}")
    A("s_cbranch_vccz L_guok")
    A(f"s_add_u32 s{sSPIN}, s{sSPIN}, 1"); A(f"s_cmp_lt_u32 s{sSPIN}, {SPIN_MAX}"); A("s_cbranch_scc0 L_guok")
    gu_loads()
    A("s_branch L_gupoll")
    lab("L_guok")
    vals = [GU + 2*i for i in range(8)]
    for ctl in ("quad_perm:[1,0,3,2]", "quad_perm:[2,3,0,1]"):
        for v in vals: A(f"v_add_f32_dpp v{v}, v{v}, v{v} {ctl} {DPP}")
    for v in vals: A(f"v_cvt_pk_bf16_f32 v{v}, v{v}, v{v}")
    for v in vals: A(f"v_and_b32 v{v}, 0xffff0000, v{v}")
    A(f"s_mov_b32 s{t2}, {hex(f2u(-1.4426950408889634))}")
    for i in range(4): A(f"v_mul_f32 v{vals[i]+1}, s{t2}, v{vals[i]}")
    for i in range(4): A(f"v_exp_f32 v{vals[i]+1}, v{vals[i]+1}")
    nop(1)
    for i in range(4): A(f"v_add_f32 v{vals[i]+1}, 1.0, v{vals[i]+1}")
    for i in range(4): A(f"v_rcp_f32 v{vals[i]+1}, v{vals[i]+1}")
    nop(1)
    for i in range(4): A(f"v_mul_f32 v{vals[i]}, v{vals[i]}, v{vals[i]+1}")
    for i in range(4): A(f"v_cvt_pk_bf16_f32 v{vals[i]}, v{vals[i]}, v{vals[i]}")
    for i in range(4): A(f"v_and_b32 v{vals[i]}, 0xffff0000, v{vals[i]}")
    for i in range(4): A(f"v_mul_f32 v{vals[i]}, v{vals[i]}, v{vals[4+i]}")
    A(f"v_cvt_pk_bf16_f32 v{AH}, v{vals[0]}, v{vals[1]}"); A(f"v_cvt_pk_bf16_f32 v{AH+1}, v{vals[2]}, v{vals[3]}")
    lab("L_noffn")
    C("precompute tail addresses")
    vWA, vDA, vSA, vOA, vXW, vXR2, vHA = 220, 221, 222, 223, 224, 225, 226
    sWOo, sWOo2, sDNo, sSTo, sOPo, sOPo2, sH2o, sRo = 50, 51, 52, 53, 54, 55, 56, 66
    A(f"v_lshlrev_b32 v{vT0}, 3, v{vN}")
    A(f"v_lshl_add_u32 v{vWA}, v{vSLAB}, 15, v{vT0}"); A(f"v_lshl_add_u32 v{vDA}, v{vSLAB}, 12, v{vT0}")
    A(f"s_lshl_b32 s{sWOo}, s{sH}, 17"); A(f"s_lshl_b32 s{t7}, s{sWID}, 11"); A(f"s_add_u32 s{sWOo}, s{sWOo}, s{t7}")
    A(f"s_lshl_b32 s{t7}, s{sCB}, 7"); A(f"s_add_u32 s{sWOo}, s{sWOo}, s{t7}")
    A(f"s_max_i32 s{sDNo}, s{sJB}, 0"); A(f"s_lshl_b32 s{sDNo}, s{sDNo}, 16"); A(f"s_add_u32 s{sDNo}, s{sDNo}, s{t7}")
    A(f"s_lshl_b32 s{t7}, s{sWID}, 14"); A(f"s_add_u32 s{sDNo}, s{sDNo}, s{t7}")
    srd(rA, sWO, 0x400000)
    A(f"s_mov_b32 s{rB}, s{sDN}"); A(f"s_and_b32 s{rB+1}, s{sDN+1}, 0xffff"); A(f"s_mov_b32 s{rB+3}, 0x20000")
    A(f"s_cmp_lt_i32 s{sJB}, 0"); A(f"s_cselect_b32 s{rB+2}, 0, {1792*1024}")
    A(f"v_and_b32 v{vT0}, 7, v{vN}"); A(f"v_lshlrev_b32 v{vT0}, 7, v{vT0}"); A(f"v_lshl_add_u32 v{vSA}, v{vSLAB}, 10, v{vT0}")
    A(f"s_lshl_b32 s{sSTo}, s{sHKV}, 12"); A(f"s_and_b32 s{t7}, s{sH}, 3"); A(f"s_lshl_b32 s{t7}, s{t7}, 4"); A(f"s_add_u32 s{sSTo}, s{sSTo}, s{t7}"); A(f"s_add_u32 s{sSTo}, s{sSTo}, {WS_ST}")
    A(f"v_lshrrev_b32 v{vT0}, 2, v{vN}"); A(f"v_and_b32 v{vT1}, 3, v{vN}"); A(f"v_lshl_add_u32 v{vT0}, v{vT0}, 3, v{vT1}")
    A(f"v_lshlrev_b32 v{vT0}, 9, v{vT0}"); A(f"v_lshl_add_u32 v{vOA}, v{vSLAB}, 5, v{vT0}")
    A(f"s_lshl_b32 s{sOPo}, s{sH}, 14"); A(f"s_lshl_b32 s{t7}, s{sWID}, 7"); A(f"s_add_u32 s{sOPo}, s{sOPo}, s{t7}"); A(f"s_add_u32 s{sOPo}, s{sOPo}, {WS_OP}")
    A(f"s_lshl_b32 s{t7}, s{sWID}, 10"); A(f"s_add_u32 s{t7}, s{t7}, {L_X}"); A(f"v_lshl_add_u32 v{vXW}, v0, 4, s{t7}")
    A(f"s_lshl_b32 s{t7}, s{sWID}, 9"); A(f"s_add_u32 s{t7}, s{t7}, {L_X}"); A(f"v_lshl_add_u32 v{vXR2}, v0, 3, s{t7}")
    A(f"v_lshrrev_b32 v{vT0}, 5, v0"); A(f"v_lshlrev_b32 v{vT0}, 17, v{vT0}")
    A(f"v_bfe_u32 v{vT1}, v0, 2, 3"); A(f"v_lshl_add_u32 v{vT0}, v{vT1}, 11, v{vT0}")
    A(f"v_and_b32 v{vT1}, 3, v0"); A(f"v_lshl_add_u32 v{vHA}, v{vT1}, 4, v{vT0}")
    A(f"s_lshl_b32 s{sH2o}, s{sWID}, 18"); A(f"s_lshl_b32 s{t7}, s{sCB}, 14"); A(f"s_add_u32 s{sH2o}, s{sH2o}, s{t7}")
    A(f"s_lshl_b32 s{t7}, s{sH}, 6"); A(f"s_add_u32 s{sH2o}, s{sH2o}, s{t7}"); A(f"s_add_u32 s{sH2o}, s{sH2o}, {WS_H2}")
    A(f"s_lshl_b32 s{sRo}, s2, 11"); A(f"s_add_u32 s{sRo}, s{sRo}, {WS_H2}")
    A("s_waitcnt vmcnt(0) lgkmcnt(0)")
    A("s_barrier")
    stamp(6)
    A(f"s_cmp_eq_u32 s{sWID}, 3"); A("s_cbranch_scc0 L_nostat")
    C("WG-level softmax stats publish")
    A(f"v_and_b32 v{vT0}, 3, v0"); A(f"v_lshlrev_b32 v{vT1}, 4, v{vT0}"); A(f"v_add_u32 v{vT1}, {L_ST}, v{vT1}")
    A(f"ds_read_b128 {R(8,4)}, v{vT1}"); A(f"ds_read_b128 {R(12,4)}, v{vT1} offset:64")
    A(f"s_mov_b32 s{t7}, {hex(f2u(1.4426950408889634))}")
    A("s_waitcnt lgkmcnt(0)")
    A("v_max3_f32 v16, v8, v9, v10"); A("v_max_f32 v16, v16, v11")
    for i in range(4): A(f"v_sub_f32 v{8+i}, v{8+i}, v16")
    for i in range(4): A(f"v_mul_f32 v{8+i}, s{t7}, v{8+i}")
    for i in range(4): A(f"v_exp_f32 v{8+i}, v{8+i}")
    A(f"v_mov_b32 v17, s{sTAG}"); A(f"v_mov_b32 v19, s{sTAG}")
    A("v_mul_f32 v18, v8, v12")
    for i in range(1, 4): A(f"v_fmac_f32 v18, v{8+i}, v{12+i}")
    A(f"v_lshlrev_b32 v{vT1}, 4, v0")
    A(f"s_lshl_b32 s{t7}, s{sHKV}, 12"); A(f"s_lshl_b32 s{sSPIN}, s{sR}, 7"); A(f"s_add_u32 s{t7}, s{t7}, s{sSPIN}"); A(f"s_add_u32 s{t7}, s{t7}, {WS_ST}")
    A("s_mov_b64 exec, 0xff")
    A(f"buffer_store_dwordx4 v[16:19], v{vT1}, {S4(rWS)}, s{t7} offen sc1")
    A("s_mov_b64 exec, -1")
    lab("L_nostat")
    C("tail weight tiles")
    TW, TD = 24, 40
    for j in range(8):
        A(f"buffer_load_dwordx2 {R(TW+2*j,2)}, v{vWA}, {S4(rA)}, s{sWOo} offen offset:{1024*(j&1)} nt")
        if j & 1 and j < 7: A(f"s_add_u32 s{sWOo}, s{sWOo}, 8192")
    for j in range(4): A(f"buffer_load_dwordx2 {R(TD+2*j,2)}, v{vDA}, {S4(rB)}, s{sDNo} offen offset:{1024*j} nt")
    A(f"s_add_u32 s{sOPo2}, s{sOPo}, 2048")
    A("s_barrier")
    stamp(7)
    SG, OG = 48, 52
    BW, BD, DF, DD, ACC, vW = 72, 88, 96, 112, 144, 148
    A(f"buffer_load_dwordx4 {R(SG,4)}, v{vSA}, {S4(rWS)}, s{sSTo} offen sc1")
    A("s_waitcnt vmcnt(1)")
    order = [0, 2, 1, 3]
    for e in range(4):
        for i in range(4):
            pr = order[i]
            A(f"v_perm_b32 v{BW+4*e+i}, v{TW+2*(2*pr+1)+(e>>1)}, v{TW+2*(2*pr)+(e>>1)}, s{sHI if e&1 else sLO}")
    for e in range(4):
        for i in range(2):
            A(f"v_perm_b32 v{BD+2*e+i}, v{TD+2*(2*i+1)+(e>>1)}, v{TD+2*(2*i)+(e>>1)}, s{sHI if e&1 else sLO}")
    def o_loads(p):
        A(f"buffer_load_dwordx4 {R(OG+8*p,4)}, v{vOA}, {S4(rWS)}, s{sOPo if p==0 else sOPo2} offen sc1")
        A(f"buffer_load_dwordx4 {R(OG+8*p+4,4)}, v{vOA}, {S4(rWS)}, s{sOPo if p==0 else sOPo2} offen offset:16 sc1")
    o_loads(0); o_loads(1)
    for e in range(4): A(f"v_mfma_f32_16x16x16_bf16 {R(DF+4*e,4)}, {R(AH,2)}, {R(BD+2*e,2)}, 0")
    A(f"s_mov_b32 s{sSPIN}, 0")
    A("s_waitcnt vmcnt(4)")
    lab("L_stpoll")
    A(f"v_bitop3_b32 v{SG+1}, v{SG+1}, v{SG+3}, s{sTAG} bitop3:0x7e")
    A(f"v_cmp_ne_u32 vcc, 0, v{SG+1}")
    A("s_cbranch_vccz L_stok")
    A(f"s_add_u32 s{sSPIN}, s{sSPIN}, 1"); A(f"s_cmp_lt_u32 s{sSPIN}, {SPIN_MAX}"); A("s_cbranch_scc0 L_stok")
    if o.get('sleep_st'): A(f"s_sleep {o['sleep_st']}")
    A(f"buffer_load_dwordx4 {R(SG,4)}, v{vSA}, {S4(rWS)}, s{sSTo} offen sc1")
    A("s_waitcnt vmcnt(0)")
    A("s_branch L_stpoll")
    lab("L_stok")
    A(f"s_mov_b32 s{t7}, {hex(f2u(1.4426950408889634))}")
    A(f"v_mov_b32 v{SG+1}, v{SG}")
    dpp_op("v_max_f32", SG+1, "quad_perm:[1,0,3,2]"); dpp_op("v_max_f32", SG+1, "quad_perm:[2,3,0,1]"); dpp_op("v_max_f32", SG+1, "row_ror:4")
    A(f"v_sub_f32 v{SG}, v{SG}, v{SG+1}"); A(f"v_mul_f32 v{SG}, s{t7}, v{SG}"); A(f"v_exp_f32 v{SG}, v{SG}"); nop(1)
    A(f"v_mul_f32 v{SG+2}, v{SG}, v{SG+2}")
    dpp_op("v_add_f32", SG+2, "quad_perm:[1,0,3,2]"); dpp_op("v_add_f32", SG+2, "quad_perm:[2,3,0,1]"); dpp_op("v_add_f32", SG+2, "row_ror:4")
    A(f"v_rcp_f32 v{SG+2}, v{SG+2}"); nop(1)
    A(f"v_mul_f32 v{vW}, v{SG}, v{SG+2}")
    for e in range(4): A(f"v_mov_b32 v{ACC+e}, v{DF+4*e}")
    C("O partial gather (retry only the lanes still missing)")
    A(f"s_mov_b64 s[{mA}:{mA+1}], -1"); A(f"s_mov_b64 s[{mB}:{mB+1}], -1")
    A(f"s_mov_b32 s{sSPIN}, 0")
    lab("L_opoll")
    A("s_waitcnt vmcnt(0)")
    for p, mk in ((0, mA), (1, mB)):
        A(f"v_bitop3_b32 v{vT0}, v{OG+8*p+1}, v{OG+8*p+3}, s{sTAG} bitop3:0x7e")
        A(f"v_bitop3_b32 v{vT1}, v{OG+8*p+5}, v{OG+8*p+7}, s{sTAG} bitop3:0x7e")
        A(f"v_or_b32 v{vT0}, v{vT0}, v{vT1}")
        A(f"v_cmp_ne_u32 s[{mk}:{mk+1}], 0, v{vT0}")
    A(f"s_or_b64 s[{mC}:{mC+1}], s[{mA}:{mA+1}], s[{mB}:{mB+1}]")
    A("s_cbranch_scc0 L_ook")
    A(f"s_add_u32 s{sSPIN}, s{sSPIN}, 1"); A(f"s_cmp_lt_u32 s{sSPIN}, {SPIN_MAX}"); A("s_cbranch_scc0 L_ook")
    if o['sleep_o']: A(f"s_sleep {o['sleep_o']}")
    A(f"s_mov_b64 exec, s[{mA}:{mA+1}]"); A("s_cbranch_execz L_o1")
    o_loads(0)
    lab("L_o1")
    A(f"s_mov_b64 exec, s[{mB}:{mB+1}]"); A("s_cbranch_execz L_o2")
    o_loads(1)
    lab("L_o2")
    A("s_mov_b64 exec, -1")
    A("s_branch L_opoll")
    lab("L_ook")
    stamp(8)
    for p in range(2):
        A(f"v_mov_b32 v{OG+8*p+1}, v{OG+8*p+4}"); A(f"v_mov_b32 v{OG+8*p+3}, v{OG+8*p+6}")
    nop(1)
    seq = [(p, e) for p in range(2) for e in range(4)]
    def fm(idx):
        p, e = seq[idx]
        for r in range(4): A(f"v_fmac_f32_dpp v{ACC+e}, v{vW}, v{DD+16*p+4*e+r} row_newbcast:{4*p+r} {DPP}")
    for idx, (p, e) in enumerate(seq):
        A(f"v_mfma_f32_16x16x32_bf16 {R(DD+16*p+4*e,4)}, {R(OG+8*p,4)}, {R(BW+4*e,4)}, 0")
    nop(1)
    for p in range(2):
        for r in range(4):
            for e in range(4):
                A(f"v_fmac_f32_dpp v{ACC+e}, v{vW}, v{DD+16*p+4*e+r} row_newbcast:{4*p+r} {DPP}")
    A(f"ds_write_b128 v{vXW}, {R(ACC,4)}")
    A("s_waitcnt lgkmcnt(0)")
    A("s_barrier")
    A(f"s_cmp_ge_u32 s{sWID}, 2"); A("s_cbranch_scc1 L_final")
    for k in range(4): A(f"ds_read_b64 {R(8+2*k,2)}, v{vXR2} offset:{1024*k}")
    A(f"v_mov_b32 v17, s{sTAG}"); A(f"v_mov_b32 v19, s{sTAG}")
    A("s_waitcnt lgkmcnt(2)"); A("v_pk_add_f32 v[8:9], v[8:9], v[10:11]")
    A("s_waitcnt lgkmcnt(0)"); A("v_pk_add_f32 v[12:13], v[12:13], v[14:15]")
    A("v_add_f32 v16, v8, v12"); A("v_add_f32 v18, v9, v13")
    A(f"buffer_store_dwordx4 v[16:19], v{vHA}, {S4(rWS)}, s{sH2o} offen sc1")
    if stamps:
        stamp(9)
        A(f"s_cmp_eq_u32 s{sWID}, 0"); A("s_cbranch_scc1 L_wstamp0")
    A("s_endpgm")
    lab("L_final")
    A(f"s_cmp_eq_u32 s{sWID}, 2"); A("s_cbranch_scc0 L_end")
    C("final reduction over heads for 8 outputs")
    srd(rB, sOUT, 4096)
    A(f"v_lshlrev_b32 v{vT1}, 4, v0")
    A(f"s_mov_b32 s{sSPIN}, 0")
    d = o['delay_h2']
    if d: A(f"s_sleep {d}")
    lab("L_hpoll")
    A(f"buffer_load_dwordx4 v[8:11], v{vT1}, {S4(rWS)}, s{sRo} offen sc1")
    A(f"buffer_load_dwordx4 v[12:15], v{vT1}, {S4(rWS)}, s{sRo} offen offset:1024 sc1")
    A("s_waitcnt vmcnt(0)")
    A(f"v_bitop3_b32 v9, v9, v11, s{sTAG} bitop3:0x7e"); A(f"v_bitop3_b32 v13, v13, v15, s{sTAG} bitop3:0x7e")
    A("v_or_b32 v9, v9, v13")
    A("v_cmp_ne_u32 vcc, 0, v9")
    A("s_cbranch_vccz L_hok")
    if o['sleep_h2']: A(f"s_sleep {o['sleep_h2']}")
    A(f"s_add_u32 s{sSPIN}, s{sSPIN}, 1"); A(f"s_cmp_lt_u32 s{sSPIN}, {SPIN_MAX}"); A("s_cbranch_scc1 L_hpoll")
    lab("L_hok")
    A("v_add_f32 v8, v8, v12"); A("v_add_f32 v10, v10, v14")
    nop(1)
    for ctl in ("row_ror:4", "row_ror:8"):
        A(f"v_add_f32_dpp v8, v8, v8 {ctl} {DPP}"); A(f"v_add_f32_dpp v10, v10, v10 {ctl} {DPP}"); nop(1)
    for sw in ("v_permlane16_swap_b32", "v_permlane32_swap_b32"):
        A("v_mov_b32 v9, v8"); A("v_mov_b32 v11, v10"); nop(2)
        A(f"{sw} v8, v9"); A(f"{sw} v10, v11"); nop(1)
        A("v_add_f32 v8, v8, v9"); A("v_add_f32 v10, v10, v11")
    A(f"v_lshlrev_b32 v12, 16, v{vXR}"); A(f"v_and_b32 v13, 0xffff0000, v{vXR}")
    A("v_add_f32 v8, v8, v12"); A("v_add_f32 v10, v10, v13")
    A("v_cvt_pk_bf16_f32 v8, v8, v10")
    A(f"s_lshl_b32 s{t1}, s2, 4")
    A("s_mov_b64 exec, 15")
    A(f"buffer_store_dword v8, v{vXR+1}, {S4(rB)}, s{t1} offen")
    A("s_cmp_eq_u32 s2, 0"); A("s_cbranch_scc0 L_noep")
    C("advance the hand-off epoch (every workgroup has read it by now)")
    A("s_mov_b64 exec, 1")
    A(f"s_sub_u32 s{t1}, s{sTAG}, 0x7F4A7C15"); A(f"s_mul_i32 s{t1}, s{t1}, {hex(pow(0x9E3779B1, -1, 1<<32))}"); A(f"s_add_u32 s{t1}, s{t1}, 1")
    A(f"v_mov_b32 v9, s{t1}"); A("v_mov_b32 v10, 0")
    A(f"buffer_store_dword v9, v10, {S4(rWS)}, 0 offen offset:{WS_EPOCH} sc1")
    lab("L_noep")
    if o.get('calib'):
        lab("L_cal")
        A("s_memrealtime s[90:91]"); A("s_waitcnt lgkmcnt(0)")
        A("s_sub_u32 s92, s90, s94"); A(f"s_cmp_lt_u32 s92, {o['calib']}"); A("s_cbranch_scc1 L_cal")
    if stamps:
        A("s_mov_b64 exec, -1")
        stamp(10)
        A("s_waitcnt lgkmcnt(0)")
        A(f"s_add_u32 s{t2}, s{sWS}, 0x10000000"); A(f"s_addc_u32 s{t3}, s{sWS+1}, 0")
        A(f"s_mul_i32 s{t1}, s2, 128"); A(f"v_mov_b32 v6, s{t1}")
        A(f"v_mov_b32 v8, s{sST+20}"); A(f"v_mov_b32 v9, s{sST+21}")
        A(f"global_store_dwordx2 v6, v[8:9], s[{t2}:{t3}] offset:80")
        if stamps == 2:
            A("s_mov_b64 exec, 1"); A("v_mov_b32 v6, 0")
            A(f"global_atomic_umax v6, v8, s[{sDBG}:{sDBG+1}] offset:40")
    A("s_endpgm")
    if stamps:
        lab("L_wstamp0")
        A("s_waitcnt lgkmcnt(0)")
        A(f"s_add_u32 s{t2}, s{sWS}, 0x10000000"); A(f"s_addc_u32 s{t3}, s{sWS+1}, 0")
        A(f"s_mul_i32 s{t1}, s2, 128"); A(f"v_mov_b32 v6, s{t1}")
        for i in range(10):
            A(f"v_mov_b32 v8, s{sST+2*i}"); A(f"v_mov_b32 v9, s{sST+2*i+1}")
            A(f"global_store_dwordx2 v6, v[8:9], s[{t2}:{t3}] offset:{8*i}"); nop(2)
        if stamps == 2:
            A("s_mov_b64 exec, 1"); A("v_mov_b32 v6, 0")
            for i in range(10):
                A(f"v_mov_b32 v8, s{sST+2*i}")
                A(f"global_atomic_umax v6, v8, s[{sDBG}:{sDBG+1}] offset:{4*i}"); nop(2)
            for k, i in enumerate((0, 6, 7)):
                A(f"v_not_b32 v8, s{sST+2*i}")
                A(f"global_atomic_umax v6, v8, s[{sDBG}:{sDBG+1}] offset:{44+4*k}"); nop(2)
        A("s_endpgm")

    L.append(".p2align 6")
    lab("L_att")
    C("---- attention waves 4..7")
    sAW, sBASE, sBLK, sLB = t0, t1, t2, t3
    VV, PA, PT, XX, YY = 128, 64, 24, 8, 12
    A(f"s_sub_u32 s{sAW}, s{sWID}, 4")
    A(f"s_lshr_b32 s{sBASE}, s{sR}, 3"); A(f"s_lshl_b32 s{sBASE}, s{sBASE}, 3"); A(f"s_add_u32 s{sBASE}, s{sBASE}, s{sHKV}"); A(f"s_lshl_b32 s{sBASE}, s{sBASE}, 22")
    A(f"s_and_b32 s{t4}, s{sR}, 7"); A(f"s_lshl_b32 s{t4}, s{t4}, 17"); A(f"s_add_u32 s{sBASE}, s{sBASE}, s{t4}"); A(f"s_add_u32 s{sBASE}, s{sBASE}, {12288*256}")
    A(f"s_add_u32 s{sBLK}, s{sR}, s{sAW}")
    if o['rotx']:
        A(f"s_mul_i32 s{t4}, s{sHKV}, {o['rotx']}"); A(f"s_add_u32 s{sBLK}, s{sBLK}, s{t4}")
    A(f"s_lshl_b32 s{sBLK}, s{sBLK}, 12")
    A(f"s_lshl_b32 s{sLB}, s{sAW}, 15")
    A(f"v_lshlrev_b32 v4, 2, v{vSLAB}"); A(f"v_xor_b32 v4, v4, v{vN}"); A(f"v_lshlrev_b32 v5, 8, v{vSLAB}")
    for a in range(4):
        if o.get('noswz'): A(f"v_lshlrev_b32 v{16+a}, 4, v0")
        else:
            A(f"v_xor_b32 v{16+a}, {a}, v4"); A(f"v_lshl_add_u32 v{16+a}, v{16+a}, 4, v5")
    A("v_lshlrev_b32 v20, 4, v0")
    A(f"s_lshl_b32 s{t4}, s{sAW}, 2"); A(f"s_add_u32 s{t4}, s{t4}, {L_F}"); A(f"v_mov_b32 v21, s{t4}"); A("v_mov_b32 v22, 1")
    A("s_waitcnt lgkmcnt(0)")
    srd(rA, sK, 0x8000000); srd(rB, sV, 0x8000000)
    load_epoch()
    A(f"s_mov_b32 s{t5}, s{sBLK}"); A(f"s_mov_b32 m0, s{sLB}"); A(f"s_add_u32 s{t6}, s{sLB}, 32768")
    A("s_barrier")
    lab("L_kloop")
    A(f"s_and_b32 s{t4}, s{t5}, 0x1ffff"); A(f"s_add_u32 s{t4}, s{t4}, s{sBASE}")
    for a in range(4): A(f"buffer_load_dwordx4 v{16+a}, {S4(rA)}, s{t4} offen offset:{1024*a}{KVF} lds")
    A(f"s_add_u32 s{t5}, s{t5}, 16384"); A("s_add_u32 m0, m0, 4096")
    A(f"s_cmp_lt_u32 m0, s{t6}"); A("s_cbranch_scc1 L_kloop")
    stamp(1)
    for i in range(32):
        if i % 4 == 0:
            A(f"s_and_b32 s{t4}, s{sBLK}, 0x1ffff"); A(f"s_add_u32 s{t4}, s{t4}, s{sBASE}"); A(f"s_add_u32 s{sBLK}, s{sBLK}, 16384")
        A(f"buffer_load_dwordx4 {R(VV+4*i,4)}, v20, {S4(rB)}, s{t4} offen offset:{1024*(i&3)}{KVF}")
        if i + 1 == o['kwait']:
            A(f"s_waitcnt vmcnt({o['kwait']})"); A("ds_write_b32 v21, v22")
            stamp(2)
    stamp(3)
    srd(rWS, sWS, WS_END)
    A(f"v_and_b32 v4, 3, v{vN}"); A("v_mul_u32_u24 v4, 320, v4"); A(f"v_lshl_add_u32 v4, v{vSLAB}, 4, v4")
    A(f"s_mul_i32 s{t4}, s{sAW}, 1280"); A(f"s_add_u32 s{t4}, s{t4}, {L_P}"); A(f"v_add_u32 v4, s{t4}, v4")
    A(f"v_lshrrev_b32 v5, 2, v{vN}"); A(f"v_mov_b32 v6, {L_Z}")
    for g in range(4):
        A(f"v_cmp_eq_u32 vcc, {g}, v5"); nop(2); A(f"v_cndmask_b32 v{16+g}, v6, v4, vcc")
    A(f"v_mov_b32 v4, {L_MW}")
    A(f"s_lshl_b32 s{t4}, s{sAW}, 4"); A(f"s_add_u32 s{t4}, s{t4}, {L_MW}"); A(f"v_mov_b32 v5, s{t4}")
    A(f"s_lshl_b32 s{t4}, s{sAW}, 11"); A(f"s_add_u32 s{t4}, s{t4}, {L_O}"); A(f"v_lshl_add_u32 v21, v0, 3, s{t4}")
    A(f"s_lshl_b32 s{t4}, s{sAW}, 9"); A(f"s_add_u32 s{t4}, s{t4}, {L_O}"); A(f"v_lshl_add_u32 v22, v0, 4, s{t4}")
    A("v_lshlrev_b32 v23, 4, v0")
    A(f"s_lshl_b32 s{t5}, s{sHKV}, 2"); A(f"s_add_u32 s{t5}, s{t5}, s{sAW}"); A(f"s_lshl_b32 s{t5}, s{t5}, 14")
    A(f"s_lshl_b32 s{t4}, s{sR}, 9"); A(f"s_add_u32 s{t5}, s{t5}, s{t4}"); A(f"s_add_u32 s{t5}, s{t5}, {WS_OP}")
    A("s_waitcnt lgkmcnt(0)")
    make_tag()
    A("s_barrier")
    for u in range(4):
        for g in range(4): A(f"ds_read_b128 {R(PA+16*u+4*g,4)}, v{16+g} offset:{64*u}")
        if u == 1: A("s_waitcnt lgkmcnt(4)")
    FS = 56
    A("s_waitcnt lgkmcnt(6)")
    for k in range(4): A(f"ds_read_b128 {R(PT+4*k,4)}, v4 offset:{16*k}")
    A(f"ds_read_b128 {R(FS,4)}, v5")
    A(f"s_mov_b32 s{t7}, {hex(f2u(1.4426950408889634))}")
    A("s_waitcnt lgkmcnt(0)")
    for h in range(4): A(f"v_max3_f32 v{PT+h}, v{PT+h}, v{PT+4+h}, v{PT+8+h}")
    for h in range(4): A(f"v_max_f32 v{PT+h}, v{PT+h}, v{PT+12+h}")
    for h in range(4): A(f"v_sub_f32 v{FS+h}, v{FS+h}, v{PT+h}")
    for h in range(4): A(f"v_mul_f32 v{FS+h}, s{t7}, v{FS+h}")
    for h in range(4): A(f"v_exp_f32 v{FS+h}, v{FS+h}")
    C("P.V")
    for u in range(4):
        A(f"s_waitcnt vmcnt({24-8*u})")
        def perms(e):
            for i in range(4):
                A(f"v_perm_b32 v{PT+4*e+i}, v{VV+4*(8*u+2*i+1)+(e>>1)}, v{VV+4*(8*u+2*i)+(e>>1)}, s{sHI if e&1 else sLO}")
        def mf(e):
            acc = YY if e & 1 else XX
            first = (u == 0 and e < 2)
            A(f"v_mfma_f32_16x16x32_bf16 {R(acc,4)}, {R(PA+16*u+4*(e>>1),4)}, {R(PT+4*e,4)}, {'0' if first else R(acc,4)}")
        perms(0)
        for e in range(1, 8):
            perms(e); mf(e-1)
        nop(2)
        mf(7)
    stamp(4)
    nop(7)
    for h in range(4):
        A(f"v_mul_f32 v{PT+2*h}, v{XX+h}, v{FS+h}")
    for h in range(4):
        A(f"v_mul_f32 v{PT+2*h+1}, v{YY+h}, v{FS+h}")
    for h in range(4): A(f"ds_write_b64 v21, {R(PT+2*h,2)} offset:{512*h}")
    A("s_waitcnt lgkmcnt(0)")
    A("s_barrier")
    A("s_mov_b32 exec_hi, 0")
    for k in range(4): A(f"ds_read_b128 {R(PT+8+4*k,4)}, v22 offset:{2048*k}")
    A(f"v_mov_b32 v{PT+1}, s{sTAG}"); A(f"v_mov_b32 v{PT+3}, s{sTAG}")
    A("s_waitcnt lgkmcnt(2)")
    A(f"v_pk_add_f32 {R(PT+8,2)}, {R(PT+8,2)}, {R(PT+12,2)}"); A(f"v_pk_add_f32 {R(PT+10,2)}, {R(PT+10,2)}, {R(PT+14,2)}")
    A("s_waitcnt lgkmcnt(0)")
    A(f"v_pk_add_f32 {R(PT+16,2)}, {R(PT+16,2)}, {R(PT+20,2)}"); A(f"v_pk_add_f32 {R(PT+18,2)}, {R(PT+18,2)}, {R(PT+22,2)}")
    A(f"v_pk_add_f32 {R(PT+8,2)}, {R(PT+8,2)}, {R(PT+16,2)}"); A(f"v_pk_add_f32 {R(PT+10,2)}, {R(PT+10,2)}, {R(PT+18,2)}")
    A(f"v_cvt_pk_bf16_f32 v{PT}, v{PT+8}, v{PT+9}"); A(f"v_cvt_pk_bf16_f32 v{PT+2}, v{PT+10}, v{PT+11}")
    A(f"buffer_store_dwordx4 {R(PT,4)}, v23, {S4(rWS)}, s{t5} offen sc1")
    if stamps:
        stamp(5)
        A(f"s_cmp_eq_u32 s{sWID}, 4"); A("s_cbranch_scc0 L_end")
        A("s_waitcnt lgkmcnt(0)")
        A(f"s_add_u32 s{t2}, s{sWS}, 0x10000000"); A(f"s_addc_u32 s{t3}, s{sWS+1}, 0")
        A(f"s_mul_i32 s{t1}, s2, 128"); A(f"v_mov_b32 v6, s{t1}")
        for i in range(1, 6):
            A(f"v_mov_b32 v8, s{sST+2*i}"); A(f"v_mov_b32 v9, s{sST+2*i+1}")
            A(f"global_store_dwordx2 v6, v[8:9], s[{t2}:{t3}] offset:{8*(10+i)}"); nop(2)
    lab("L_end")
    A("s_endpgm")
    lab("L_codeend")
    L.append('.section .rodata,"a"'); L.append(".p2align 6"); L.append(f".amdhsa_kernel {NAME}_kernel")
    for s in ("next_free_vgpr 256", "next_free_sgpr 96", "accum_offset 256", "group_segment_fixed_size 0", "kernarg_size 96",
              "user_sgpr_count 2", "user_sgpr_kernarg_segment_ptr 1", "system_sgpr_workgroup_id_x 1",
              "float_denorm_mode_32 3", "float_denorm_mode_16_64 3"):
        L.append("  .amdhsa_" + s)
    L.append(".end_amdhsa_kernel")
    return "\n".join(L) + "\n"

if __name__ == "__main__":
    import json
    out = sys.argv[1]
    st = int(sys.argv[2]) if len(sys.argv) > 2 else 0
    opts = json.loads(sys.argv[3]) if len(sys.argv) > 3 else None
    open(out, "w").write(gen(st, opts))
```

```python
import sys, struct
NAME = "parallel_sum__sliding_block_cached__swiglu_ffn__decode"

def f2u(x): return struct.unpack("<I", struct.pack("<f", x))[0]
LOG2E = hex(f2u(1.4426950408889634))
TAGK, TAGC = 0x9E3779B1, 0x7F4A7C18

WS_EPOCH = 0
WS_QP = 0x1000
WS_GU = WS_QP + 256*1024
WS_PR = WS_GU + 224*1024
WS_ST = WS_PR + 32*1024
WS_OP = WS_ST + 16*1024
WS_H2 = WS_OP + 512*1024
WS_END = WS_H2 + 512*1024
L_K = 0
L_Q = 131072
L_Z = L_Q + 1280
L_F = L_Z + 256
L_ST = L_F + 128
L_MW = L_ST + 128
L_P = L_MW + 64
L_O = L_P + 4*1280
L_X = L_O + 8192
L_S = L_X + 4096
assert L_P % 16 == 0 and L_O % 16 == 0 and L_X % 16 == 0

SPIN_MAX = 1 << 16
REPUB_AT = 6

def gen(stamps=False, opts=None):
    o = dict(wk=[6,6,6,6,6], wv=6, wv2=6, vfree=32, pchk=19, kwait=7, rotx=0, sleep_q=1, sleep_o=0, sleep_h2=4, delay_h2=12, wo_at="b2", dn_at="b2", pt=0, oearly=6)
    if opts: o.update(opts)
    L_END = L_S + (256 if stamps else 0)
    KVF = ' nt'; HOF = o.get('hof', ' sc1 nt')
    HLF = o.get('hlf', ' sc1'); HSF = o.get('hsf', ' sc1')
    L = []
    def A(s): L.append("    " + s)
    def lab(s): L.append(s + ":")
    def C(s): L.append("    ; " + s)
    def nop(n): A(f"s_nop {n-1}")
    DPP = "row_mask:0xf bank_mask:0xf"
    sX, sK, sV, sWQ, sWO, sG, sU, sDN, sOUT, sDBG, sWS = 4, 6, 8, 10, 12, 16, 18, 20, 22, 24, 26
    sWID, sHKV, sR, sTAG = 28, 29, 30, 31
    rWS, rA, rB = 32, 36, 40
    sLO, sHI = 44, 45
    sSPIN = 46
    sH, sCB, sJB = 47, 48, 49
    t0, t1, t2, t3, t4, t5, t6, t7 = 50, 51, 52, 53, 54, 55, 56, 57
    mA, mB, mC = 58, 60, 62
    sEP, sMODE, sPOFF, sPUB = 14, 15, 3, 64
    sSTL, sTAGX = 65, 66
    sST = 68
    def stamp(i):
        if stamps: A(f"s_memrealtime s[{sST+2*i}:{sST+2*i+1}]")
    def stamps_to_lds(pairs):
        A("s_mov_b64 exec, -1")
        A("s_waitcnt lgkmcnt(0)")
        A(f"v_mov_b32 v6, {L_S}")
        for i, slot in pairs:
            A(f"v_mov_b32 v8, s{sST+2*i}"); A(f"v_mov_b32 v9, s{sST+2*i+1}")
            A(f"ds_write_b64 v6, v[8:9] offset:{8*slot}"); nop(2)
        A("s_waitcnt lgkmcnt(0)")
    def srd(r, p, nrec):
        A(f"s_mov_b32 s{r}, s{p}"); A(f"s_and_b32 s{r+1}, s{p+1}, 0xffff")
        A(f"s_mov_b32 s{r+2}, {nrec}"); A(f"s_mov_b32 s{r+3}, 0x20000")
    def R(a, n): return f"v[{a}:{a+n-1}]"
    def S4(r): return f"s[{r}:{r+3}]"
    vSLAB, vN = 2, 3
    def load_epoch():
        A(f"s_load_dword s{sEP}, s[{sWS}:{sWS+1}], {WS_EPOCH}")
    def make_tag():
        A(f"s_mul_i32 s{sTAG}, s{sEP}, {hex(TAGK)}"); A(f"s_add_u32 s{sTAG}, s{sTAG}, {hex(TAGC)}"); A(f"s_andn2_b32 s{sTAG}, s{sTAG}, 7")
    def xsum_slabs(v, tmp, op="v_add_f32"):
        A(f"v_mov_b32 v{tmp}, v{v}"); nop(2)
        A(f"v_permlane16_swap_b32 v{v}, v{tmp}"); nop(1)
        A(f"{op} v{v}, v{v}, v{tmp}")
        A(f"v_mov_b32 v{tmp}, v{v}"); nop(2)
        A(f"v_permlane32_swap_b32 v{v}, v{tmp}"); nop(1)
        A(f"{op} v{v}, v{v}, v{tmp}")
    def dpp_op(op, v, ctl):
        nop(2); A(f"{op}_dpp v{v}, v{v}, v{v} {ctl} {DPP}")
    def bf16r(v):
        A(f"v_cvt_pk_bf16_f32 v{v}, v{v}, v{v}"); A(f"v_and_b32 v{v}, 0xffff0000, v{v}")
    def lds_spin(name, vaddr, vtmp, mask):
        A(f"s_mov_b32 s{sSPIN}, 0")
        lab(f"L_spin_{name}")
        A(f"ds_read_b32 v{vtmp}, v{vaddr}")
        A("s_waitcnt lgkmcnt(0)")
        A(f"v_cmp_ne_u32 vcc, 0, v{vtmp}")
        A(f"s_and_b32 s{t7}, vcc_lo, {mask}")
        A(f"s_cmp_eq_u32 s{t7}, {mask}")
        A(f"s_cbranch_scc1 L_spin_{name}_done")
        A(f"s_sleep {o.get('lsleep', 2)}")
        A(f"s_add_u32 s{sSPIN}, s{sSPIN}, 1")
        A(f"s_cmp_lt_u32 s{sSPIN}, {SPIN_MAX*8}")
        A(f"s_cbranch_scc1 L_spin_{name}")
        lab(f"L_spin_{name}_done")
    def store_mode(name, instr):
        A(f"s_cmp_eq_u32 s{sMODE}, 0"); A(f"s_cbranch_scc0 L_sm_{name}")
        A(instr); A(f"s_branch L_sm_{name}_done")
        lab(f"L_sm_{name}")
        A(instr + " sc1")
        lab(f"L_sm_{name}_done")

    L.append(f"; @launch grid=(256,1,1) block=(512,1,1) lds={L_END}")
    L.append('.amdgcn_target "amdgcn-amd-amdhsa--gfx950"')
    L.append(".text"); L.append(f".globl {NAME}_kernel"); L.append(".p2align 8"); L.append(f".type {NAME}_kernel,@function")
    lab(f"{NAME}_kernel")
    A("s_cmp_ge_u32 s2, 256"); A("s_cbranch_scc1 L_end")
    A("s_load_dwordx16 s[4:19], s[0:1], 0")
    A("s_load_dwordx8 s[20:27], s[0:1], 64")
    stamp(0)
    A("v_lshrrev_b32 v1, 6, v0")
    A("v_and_b32 v0, 63, v0")
    A(f"s_and_b32 s{sHKV}, s2, 7")
    A(f"v_readfirstlane_b32 s{sWID}, v1")
    A(f"s_lshr_b32 s{sR}, s2, 3")
    A(f"v_lshrrev_b32 v{vSLAB}, 4, v0")
    A(f"v_and_b32 v{vN}, 15, v0")
    A(f"s_mov_b32 s{sLO}, 0x05040100"); A(f"s_mov_b32 s{sHI}, 0x07060302")
    A(f"s_cmp_ge_u32 s{sWID}, 4"); A("s_cbranch_scc1 L_att")
    A(f"s_and_b32 s{sJB}, s{sR}, 24"); A(f"s_add_u32 s{sJB}, s{sJB}, s{sHKV}"); A(f"s_sub_u32 s{sJB}, s{sJB}, 4")
    A(f"s_mov_b32 s{sPUB}, 0")
    A(f"s_cmp_lg_u32 s{sWID}, 0"); A("s_cbranch_scc1 L_aux")

    C("---- service wave 0: one 256x64 projection tile (wq, w_gate or w_up)")
    sSTR, sTOFF, sPPI, sKH = t0, t1, t3, t4
    XS, XA, T, F, D = 8, 24, 40, 168, 200
    PB, vPA = 232, 240
    vA0, vA1, vA2 = 4, 5, 6
    A(f"s_and_b32 s{sKH}, s{sR}, 1")
    A(f"v_lshrrev_b32 v{vA2}, 2, v{vN}"); A(f"v_lshlrev_b32 v{vA2}, 10, v{vA2}")
    A(f"v_and_b32 v{vA0}, 3, v{vN}"); A(f"v_lshl_add_u32 v{vA0}, v{vSLAB}, 2, v{vA0}"); A(f"v_lshl_add_u32 v{vA0}, v{vA0}, 4, v{vA2}")
    A(f"v_and_b32 v{vA1}, 1, v{vN}"); A(f"v_lshl_add_u32 v{vA1}, v{vA1}, 2, v{vSLAB}"); A(f"v_lshl_add_u32 v{vA1}, v{vA1}, 4, v{vA2}")
    A(f"v_lshrrev_b32 v{vA2}, 3, v{vN}"); A(f"v_lshl_add_u32 v{vA2}, v{vA2}, 2, v{vSLAB}")
    A(f"v_and_b32 v7, 7, v{vN}")
    A(f"s_bitcmp1_b32 s{sR}, 2"); A("s_cbranch_scc0 L_pq")
    A(f"s_cmp_lt_i32 s{sJB}, 0"); A("s_cbranch_scc1 L_aux")
    A(f"s_movk_i32 s{sSTR}, 3584")
    A(f"s_mul_i32 s{sTOFF}, s{sKH}, {256*3584}"); A(f"s_lshl_b32 s{t5}, s{sJB}, 7"); A(f"s_add_u32 s{sTOFF}, s{sTOFF}, s{t5}")
    A(f"s_and_b32 s{t5}, s{sR}, 3")
    A(f"s_mul_i32 s{sPOFF}, s{t5}, {4*14336}"); A(f"s_lshl_b32 s{t5}, s{sJB}, 9"); A(f"s_add_u32 s{sPOFF}, s{sPOFF}, s{t5}")
    A(f"s_add_u32 s{sPOFF}, s{sPOFF}, {WS_GU}"); A(f"s_movk_i32 s{sPPI}, 14336")
    A(f"s_mov_b32 s{rA+2}, {512*3584}")
    A("s_waitcnt lgkmcnt(0)")
    A(f"s_bitcmp1_b32 s{sR}, 1")
    A(f"s_cselect_b32 s{rA}, s{sU}, s{sG}"); A(f"s_cselect_b32 s{rA+1}, s{sU+1}, s{sG+1}")
    A("s_branch L_proj")
    lab("L_pq")
    A(f"s_movk_i32 s{sSTR}, 8192")
    A(f"s_lshr_b32 s{t5}, s{sR}, 3"); A(f"s_lshl_b32 s{t5}, s{t5}, 1"); A(f"s_bfe_u32 s{t6}, s{sR}, 0x10001"); A(f"s_add_u32 s{t5}, s{t5}, s{t6}")
    A(f"s_lshl_b32 s{t6}, s{sHKV}, 3"); A(f"s_add_u32 s{t5}, s{t5}, s{t6}")
    A(f"s_lshl_b32 s{sTOFF}, s{sKH}, 21"); A(f"s_lshl_b32 s{t6}, s{t5}, 7"); A(f"s_add_u32 s{sTOFF}, s{sTOFF}, s{t6}")
    A(f"s_lshl_b32 s{sPOFF}, s{sKH}, 17"); A(f"s_lshl_b32 s{t6}, s{t5}, 9"); A(f"s_add_u32 s{sPOFF}, s{sPOFF}, s{t6}")
    A(f"s_add_u32 s{sPOFF}, s{sPOFF}, {WS_QP}"); A(f"s_mov_b32 s{sPPI}, 32768")
    A(f"s_mov_b32 s{rA+2}, 0x400000")
    A("s_waitcnt lgkmcnt(0)")
    A(f"s_mov_b32 s{rA}, s{sWQ}"); A(f"s_mov_b32 s{rA+1}, s{sWQ+1}")
    lab("L_proj")
    A(f"s_and_b32 s{rA+1}, s{rA+1}, 0xffff"); A(f"s_mov_b32 s{rA+3}, 0x20000")
    srd(rB, sX, 4096)
    stamp(12)
    for j in range(4): A(f"buffer_load_dwordx4 {R(XS+4*j,4)}, v{vA0}, {S4(rB)}, 0 offen offset:{256*j}")
    A(f"s_lshl_b32 s{t6}, s{sSTR}, 3")
    A(f"v_mul_lo_u32 v{vA2}, v{vA2}, s{t6}"); A(f"v_lshl_add_u32 v{vA2}, v7, 4, v{vA2}")
    sRT, sTO2 = t2, t7
    if o.get('strot', 1):
        A(f"s_lshr_b32 s{sRT}, s{sR}, 3"); A(f"s_add_u32 s{sRT}, s{sRT}, s{sHKV}")
    else: A(f"s_mov_b32 s{sRT}, 0")
    A(f"s_lshl_b32 s{t6}, s{sSTR}, 6")
    for st in range(4):
        A(f"s_add_u32 s{t5}, s{sRT}, {st}"); A(f"s_and_b32 s{t5}, s{t5}, 3")
        A(f"s_mul_i32 s{sTO2}, s{t5}, s{t6}"); A(f"s_add_u32 s{sTO2}, s{sTO2}, s{sTOFF}")
        for j in range(8):
            i = 8*st + j
            A(f"buffer_load_dwordx4 {R(T+4*i,4)}, v{vA2}, {S4(rA)}, s{sTO2} offen nt")
            if j < 7: A(f"s_add_u32 s{sTO2}, s{sTO2}, s{sSTR}")
        if st == 0:
            for j in range(4):
                A(f"s_add_u32 s{t5}, s{sRT}, {j}"); A(f"s_and_b32 s{t5}, s{t5}, 3"); A(f"s_lshl_b32 s{t5}, s{t5}, 7")
                A(f"s_lshl2_add_u32 s{sSPIN}, s{sKH}, 0"); A(f"s_lshl_b32 s{sSPIN}, s{sSPIN}, 7"); A(f"s_add_u32 s{t5}, s{t5}, s{sSPIN}")
                A(f"buffer_load_dwordx4 {R(XA+4*j,4)}, v{vA1}, {S4(rB)}, s{t5} offen")
    if o.get('ppt'):
        srd(rWS, sWS, WS_END)
        A(f"v_mul_lo_u32 v{vPA}, v{vSLAB}, s{sPPI}"); A(f"v_lshl_add_u32 v{vPA}, v{vN}, 5, v{vPA}")
        A(f"buffer_load_dword v{PB}, v{vPA}, {S4(rWS)}, s{sPOFF} offen{o['ppt']}")
    load_epoch()
    if o.get('b1wait') is not None: A(f"s_waitcnt vmcnt({o['b1wait']})")
    stamp(11)
    A("s_barrier")
    stamp(2)
    C("layernorm")
    XT = 1 if o.get('ppt') else 0
    A(f"s_waitcnt vmcnt({36+XT})")
    for i in range(16):
        A(f"v_lshlrev_b32 v{F+2*i}, 16, v{XS+i}"); A(f"v_and_b32 v{F+2*i+1}, 0xffff0000, v{XS+i}")
    AC = XS
    A(f"v_pk_add_f32 {R(AC,2)}, {R(F,2)}, {R(F+2,2)}"); A(f"v_pk_add_f32 {R(AC+2,2)}, {R(F+4,2)}, {R(F+6,2)}")
    for i in range(4, 16, 2):
        A(f"v_pk_add_f32 {R(AC,2)}, {R(AC,2)}, {R(F+2*i,2)}"); A(f"v_pk_add_f32 {R(AC+2,2)}, {R(AC+2,2)}, {R(F+2*i+2,2)}")
    A(f"v_pk_add_f32 {R(AC,2)}, {R(AC,2)}, {R(AC+2,2)}")
    MU, TM = XS+4, XS+6
    A(f"v_add_f32 v{MU}, v{AC}, v{AC+1}")
    dpp_op("v_add_f32", MU, "quad_perm:[1,0,3,2]"); dpp_op("v_add_f32", MU, "quad_perm:[2,3,0,1]")
    xsum_slabs(MU, TM)
    A(f"v_mul_f32 v{MU}, {hex(f2u(1/512))}, v{MU}"); A(f"v_mov_b32 v{MU+1}, v{MU}")
    for i in range(16): A(f"v_pk_add_f32 {R(F+2*i,2)}, {R(F+2*i,2)}, {R(MU,2)} neg_lo:[0,1] neg_hi:[0,1]")
    A(f"v_pk_mul_f32 {R(AC,2)}, {R(F,2)}, {R(F,2)}"); A(f"v_pk_mul_f32 {R(AC+2,2)}, {R(F+2,2)}, {R(F+2,2)}")
    for i in range(2, 16, 2):
        A(f"v_pk_fma_f32 {R(AC,2)}, {R(F+2*i,2)}, {R(F+2*i,2)}, {R(AC,2)}"); A(f"v_pk_fma_f32 {R(AC+2,2)}, {R(F+2*i+2,2)}, {R(F+2*i+2,2)}, {R(AC+2,2)}")
    A(f"v_pk_add_f32 {R(AC,2)}, {R(AC,2)}, {R(AC+2,2)}")
    VR = XS+8
    A(f"v_add_f32 v{VR}, v{AC}, v{AC+1}")
    dpp_op("v_add_f32", VR, "quad_perm:[1,0,3,2]"); dpp_op("v_add_f32", VR, "quad_perm:[2,3,0,1]")
    xsum_slabs(VR, TM)
    A(f"v_mul_f32 v{VR}, {hex(f2u(1/512))}, v{VR}")
    bf16r(MU); A(f"v_mov_b32 v{MU+1}, v{MU}")
    bf16r(VR)
    A(f"v_add_f32 v{VR}, {hex(f2u(1e-5))}, v{VR}"); bf16r(VR)
    A(f"v_sqrt_f32 v{VR}, v{VR}"); nop(1); bf16r(VR)
    RC = XS+10
    A(f"v_rcp_f32 v{RC}, v{VR}"); nop(1)
    A(f"v_fma_f32 v{TM}, -v{VR}, v{RC}, 1.0"); A(f"v_fma_f32 v{RC}, v{TM}, v{RC}, v{RC}"); A(f"v_mov_b32 v{RC+1}, v{RC}")
    A(f"s_waitcnt vmcnt({24+XT})")
    for i in range(16):
        A(f"v_lshlrev_b32 v{F+2*i}, 16, v{XA+i}"); A(f"v_and_b32 v{F+2*i+1}, 0xffff0000, v{XA+i}")
    for i in range(16): A(f"v_pk_add_f32 {R(F+2*i,2)}, {R(F+2*i,2)}, {R(MU,2)} neg_lo:[0,1] neg_hi:[0,1]")
    for i in range(16): A(f"v_cvt_pk_bf16_f32 v{XA+i}, v{F+2*i}, v{F+2*i+1}")
    for i in range(16):
        A(f"v_lshlrev_b32 v{F+2*i}, 16, v{XA+i}"); A(f"v_and_b32 v{F+2*i+1}, 0xffff0000, v{XA+i}")
    for i in range(16): A(f"v_pk_mul_f32 {R(F+2*i,2)}, {R(F+2*i,2)}, {R(RC,2)}")
    for i in range(16): A(f"v_cvt_pk_bf16_f32 v{XA+i}, v{F+2*i}, v{F+2*i+1}")
    C("projection MFMAs")
    for st in range(4):
        if st: A(f"s_waitcnt vmcnt({(24+XT-8*st) if st < 3 else 0})")
        def perms(e):
            for i in range(4):
                A(f"v_perm_b32 v{F+4*e+i}, v{T+4*(8*st+2*i+1)+(e>>1)}, v{T+4*(8*st+2*i)+(e>>1)}, s{sHI if e&1 else sLO}")
        def mf(e):
            A(f"v_mfma_f32_16x16x32_bf16 {R(D+4*e,4)}, {R(XA+4*st,4)}, {R(F+4*e,4)}, {'0' if st==0 else R(D+4*e,4)}")
        perms(0)
        for e in range(1, 8):
            perms(e); mf(e-1)
        nop(2); mf(7)
    srd(rWS, sWS, WS_END)
    A("s_waitcnt lgkmcnt(0)")
    make_tag()
    A(f"v_mul_lo_u32 v{vPA}, v{vSLAB}, s{sPPI}"); A(f"v_lshl_add_u32 v{vPA}, v{vN}, 4, v{vPA}")
    for k in range(4): A(f"v_mov_b32 v{PB+2*k+1}, s{sTAG}")
    for k in range(4):
        A(f"v_add_f32_dpp v{PB+2*k}, v{D+4*k+1}, v{D+4*k} row_ror:8 row_mask:0xf bank_mask:0x3")
    for k in range(4):
        A(f"v_add_f32_dpp v{PB+2*k}, v{D+16+4*k}, v{D+16+4*k+1} row_ror:8 row_mask:0xf bank_mask:0xc")
    def proj_store(fl):
        A(f"buffer_store_dwordx4 {R(PB,4)}, v{vPA}, {S4(rWS)}, s{sPOFF} offen{fl}")
        A(f"buffer_store_dwordx4 {R(PB+4,4)}, v{vPA}, {S4(rWS)}, s{sPOFF} offen offset:256{fl}")
    if not o.get('nopub'): proj_store("")
    A(f"s_mov_b32 s{sPUB}, 1")
    stamp(1)
    A("s_branch L_svc")

    lab("L_aux")
    C("---- other service waves: LDS init, code prefetch")
    A(f"v_lshlrev_b32 v4, 2, v0"); A(f"v_add_u32 v4, {L_Z}, v4"); A("v_mov_b32 v5, 0")
    A("ds_write_b32 v4, v5"); A("ds_write_b32 v4, v5 offset:128")
    A(f"v_mov_b32 v{vPA}, 0"); A(f"s_mov_b32 s{sPOFF}, 0")
    A(f"s_getpc_b64 s[{t0}:{t1}]")
    lab("L_pc")
    A(f"s_sub_u32 s{t0}, s{t0}, L_pc-{NAME}_kernel"); A(f"s_subb_u32 s{t1}, s{t1}, 0")
    A(f"s_lshl_b32 s{t2}, s{sR}, 9")
    A(f"v_and_b32 v6, 7, v0"); A(f"v_lshl_add_u32 v6, v6, 6, s{t2}")
    A(f"v_min_u32 v6, L_codeend-{NAME}_kernel-4, v6")
    A(f"s_cmp_eq_u32 s{sWID}, 2"); A("s_cbranch_scc0 L_nopf")
    A(f"global_load_dword v7, v6, s[{t0}:{t1}]")
    lab("L_nopf")
    vTA = 228
    if o.get('touch'):
        A(f"s_lshl_b32 s{t2}, s{sHKV}, 5"); A(f"s_add_u32 s{t2}, s{t2}, s{sR}")
        A(f"s_lshl_b32 s{t3}, s{t2}, 11"); A(f"s_add_u32 s{t3}, s{t3}, {WS_OP}")
        A(f"v_lshl_add_u32 v{vTA}, v0, 6, s{t3}")
        A(f"s_lshl_b32 s{t3}, s{t2}, 7"); A(f"s_add_u32 s{t3}, s{t3}, {WS_PR}")
        A(f"v_and_b32 v8, 1, v0"); A(f"v_lshl_add_u32 v9, v8, 6, s{t3}")
        A(f"s_lshl_b32 s{t3}, s{t2}, 6"); A(f"s_add_u32 s{t3}, s{t3}, {WS_ST}"); A(f"v_mov_b32 v10, s{t3}")
        A(f"v_cmp_eq_u32 vcc, 2, v{vSLAB}"); nop(2); A(f"v_cndmask_b32 v{vTA}, v{vTA}, v9, vcc")
        A(f"v_cmp_eq_u32 vcc, 3, v{vSLAB}"); nop(2); A(f"v_cndmask_b32 v{vTA}, v{vTA}, v10, vcc")
    A("s_waitcnt lgkmcnt(0)")
    load_epoch()
    srd(rWS, sWS, WS_END)
    if o.get('touch'):
        A(f"s_cmp_eq_u32 s{sWID}, 1"); A("s_cbranch_scc0 L_not1")
        A(f"buffer_load_dword v{vTA+1}, v{vTA}, {S4(rWS)}, 0 offen{o['touch']}")
        lab("L_not1")
    A("s_barrier")
    if o.get('touch2'):
        A(f"s_cmp_eq_u32 s{sWID}, 1"); A("s_cbranch_scc0 L_not2")
        A("s_waitcnt vmcnt(0)")
        A(f"buffer_load_dword v{vTA+1}, v{vTA}, {S4(rWS)}, 0 offen{o['touch2']}")
        lab("L_not2")
    A("s_waitcnt lgkmcnt(0)")
    make_tag()

    lab("L_svc")
    C("---- all service waves")
    vFL, vT0, vT1, vT2 = 4, 5, 6, 7
    A(f"s_lshr_b32 s{t0}, s{sR}, 3")
    A(f"s_lshl_b32 s{sH}, s{sHKV}, 2"); A(f"s_add_u32 s{sH}, s{sH}, s{t0}")
    A(f"s_and_b32 s{sCB}, s{sR}, 7")
    A(f"s_lshl_b32 s{sSTL}, s{sHKV}, 12"); A(f"s_add_u32 s{sSTL}, s{sSTL}, {WS_PR}")
    A(f"s_getreg_b32 s{sTAGX}, hwreg(HW_REG_XCC_ID, 0, 3)"); A(f"s_or_b32 s{sTAGX}, s{sTAGX}, s{sTAG}")
    A(f"v_and_b32 v{vFL}, 31, v0"); A(f"v_lshlrev_b32 v{vFL}, 2, v{vFL}"); A(f"v_add_u32 v{vFL}, {L_F}, v{vFL}")
    PR, vPRA, vPRL = 244, 242, 243
    A(f"s_lshl_b32 s{t1}, s{sR}, 7"); A(f"v_lshl_add_u32 v{vPRA}, v0, 4, s{t1}")
    A(f"s_cmp_eq_u32 s{sWID}, 0"); A("s_cbranch_scc0 L_notw0")
    C("wave 0: presence record (tag | XCC id), then release the q gather once own stores are acknowledged")
    for k in range(4): A(f"v_mov_b32 v{PR+k}, s{sTAGX}")
    def pres_store(fl):
        A("s_mov_b64 exec, 15")
        A(f"buffer_store_dwordx4 {R(PR,4)}, v{vPRA}, {S4(rWS)}, s{sSTL} offen{fl}")
        A("s_mov_b64 exec, -1")
    if not o.get('nopres'): pres_store("")
    A(f"v_mov_b32 v{vT0}, {L_F + 8*4}"); A(f"v_mov_b32 v{vT1}, 1")
    A("s_waitcnt vmcnt(0)")
    A(f"ds_write_b32 v{vT0}, v{vT1}")
    A("s_branch L_go")
    lab("L_notw0")
    vXR = 250
    A(f"s_cmp_eq_u32 s{sWID}, 2"); A("s_cbranch_scc0 L_notw2")
    C("wave 2: residual x for the final sum; touch out's page")
    srd(rB, sX, 4096)
    A(f"v_and_b32 v{vT0}, 3, v0"); A(f"v_lshlrev_b32 v{vXR+1}, 2, v{vT0}"); A(f"s_lshl_b32 s{t1}, s2, 4")
    A(f"buffer_load_dword v{vXR}, v{vXR+1}, {S4(rB)}, s{t1} offen")
    srd(rB, sOUT, 4096)
    A(f"buffer_load_dword v{vXR+2}, v{vXR+1}, {S4(rB)}, s{t1} offen nt")
    lab("L_notw2")
    lds_spin("go", vFL, vT0, "0x100")
    lab("L_go")
    C("q gather: wave w <-> head w")
    QG = 8
    A(f"v_lshlrev_b32 v{vT1}, 4, v0")
    A(f"v_and_b32 v{vPRL}, 31, v0"); A(f"v_lshlrev_b32 v{vPRL}, 7, v{vPRL}")
    A(f"s_lshl_b32 s{t1}, s{t0}, 15"); A(f"s_lshl_b32 s{t2}, s{sHKV}, 12"); A(f"s_add_u32 s{t1}, s{t1}, s{t2}")
    A(f"s_lshl_b32 s{t2}, s{sWID}, 10"); A(f"s_add_u32 s{t1}, s{t1}, s{t2}"); A(f"s_add_u32 s{t1}, s{t1}, {WS_QP}")
    A(f"s_add_u32 s{t2}, s{t1}, {1<<17}")
    A(f"s_mov_b32 s{sSPIN}, 0"); A(f"s_mov_b32 s{sMODE}, 0")
    A(f"v_mov_b32 v16, s{sTAGX}")
    if o.get('noq'): A("s_branch L_qok")
    lab("L_qpoll")
    for k in range(2): A(f"buffer_load_dwordx4 {R(QG+4*k,4)}, v{vT1}, {S4(rWS)}, s{t1+k} offen{HOF}")
    A(f"s_cmp_eq_u32 s{sWID}, {9 if o.get('nopres') else 0}"); A("s_cbranch_scc0 L_qnp")
    A(f"buffer_load_dword v16, v{vPRL}, {S4(rWS)}, s{sSTL} offen{HOF}")
    lab("L_qnp")
    A("s_waitcnt vmcnt(0)")
    for k in range(2): A(f"v_bitop3_b32 v{QG+4*k+1}, v{QG+4*k+1}, v{QG+4*k+3}, s{sTAG} bitop3:0x7e")
    A(f"v_xor_b32 v17, s{sTAGX}, v16")
    A(f"v_or3_b32 v18, v{QG+1}, v{QG+5}, v17")
    A("v_cmp_ne_u32 vcc, 0, v18")
    A("s_cbranch_vccz L_qok")
    C("slow path: a valid presence record from another XCD, or a long wait -> switch the group hand-offs to write-through")
    A(f"s_add_u32 s{sSPIN}, s{sSPIN}, 1")
    A(f"s_cmp_eq_u32 s{sWID}, 0"); A("s_cbranch_scc0 L_qretry")
    A("v_add_u32 v19, -1, v17"); A("v_cmp_gt_u32 vcc, 7, v19")
    A("s_cbranch_vccnz L_qrepub")
    A(f"s_cmp_lt_u32 s{sSPIN}, {REPUB_AT}"); A("s_cbranch_scc1 L_qretry")
    lab("L_qrepub")
    A(f"s_cmp_eq_u32 s{sMODE}, 0"); A("s_cbranch_scc0 L_qchk")
    A(f"s_mov_b32 s{sMODE}, 2")
    pres_store(" sc1")
    A(f"s_cmp_eq_u32 s{sPUB}, 0"); A("s_cbranch_scc1 L_qchk")
    proj_store(" sc1")
    lab("L_qchk")
    A("v_and_b32 v17, -8, v17"); A(f"v_or3_b32 v18, v{QG+1}, v{QG+5}, v17")
    A("v_cmp_ne_u32 vcc, 0, v18")
    A("s_cbranch_vccz L_qok")
    lab("L_qretry")
    A(f"s_sleep {o['sleep_q']}")
    A(f"s_cmp_lt_u32 s{sSPIN}, {SPIN_MAX}"); A("s_cbranch_scc1 L_qpoll")
    lab("L_qok")
    A(f"v_add_f32 v{QG}, v{QG}, v{QG+4}"); A(f"v_add_f32 v{QG+2}, v{QG+2}, v{QG+6}")
    A(f"v_cvt_pk_bf16_f32 v{QG}, v{QG}, v{QG+2}")
    A(f"s_mul_i32 s{t1}, s{sWID}, 320"); A(f"s_add_u32 s{t1}, s{t1}, {L_Q}")
    A(f"v_and_b32 v{vT1}, 32, v0"); A(f"v_and_b32 v{vT2}, 7, v0"); A(f"v_lshl_add_u32 v{vT1}, v{vT2}, 2, v{vT1}")
    A(f"v_bfe_u32 v{vT2}, v0, 3, 1"); A(f"v_lshl_add_u32 v{vT1}, v{vT2}, 1, v{vT1}")
    A(f"v_and_b32 v{vT2}, 1, v{vSLAB}"); A(f"v_add_u32 v{vT1}, v{vT1}, v{vT2}")
    A(f"v_lshl_add_u32 v{vT1}, v{vT1}, 2, s{t1}")
    A(f"ds_write_b32 v{vT1}, v{QG}")
    A(f"s_lshl_b32 s{t1}, s{sWID}, 2"); A(f"s_add_u32 s{t1}, s{t1}, {L_F+16}"); A(f"s_or_b32 s{t2}, s{sMODE}, 1")
    A(f"v_mov_b32 v{vT1}, s{t1}"); A(f"v_mov_b32 v{vT2}, s{t2}")
    A("s_waitcnt lgkmcnt(0)")
    A(f"ds_write_b32 v{vT1}, v{vT2}")
    stamp(3)
    C("issue g/u gather: lane (slab, b, mat, kh2): f = 64*jb + 16*w + 4*slab + (0..3)")
    GU = 200
    vGA = 216
    A(f"v_lshrrev_b32 v{vT0}, 2, v0"); A(f"s_movk_i32 s{t1}, 14336"); A(f"v_mul_lo_u32 v{vT0}, v{vT0}, s{t1}")
    A(f"v_and_b32 v{vT1}, 3, v0"); A(f"v_lshl_add_u32 v{vGA}, v{vT1}, 4, v{vT0}")
    sGO = 67
    A(f"s_max_i32 s{t1}, s{sJB}, 0"); A(f"s_lshl_b32 s{sGO}, s{t1}, 9"); A(f"s_lshl_b32 s{t1}, s{sWID}, 6"); A(f"s_add_u32 s{sGO}, s{sGO}, s{t1}")
    A(f"s_add_u32 s{sGO}, s{sGO}, {WS_GU}")
    def gu_loads():
        A(f"buffer_load_dwordx4 {R(GU,4)}, v{vGA}, {S4(rWS)}, s{sGO} offen{HOF}")
        A(f"buffer_load_dwordx4 {R(GU+4,4)}, v{vGA}, {S4(rWS)}, s{sGO} offen offset:256{HOF}")
    if o.get('nogu'): A("s_branch L_nogu")
    A(f"s_cmp_lt_i32 s{sJB}, 0"); A("s_cbranch_scc1 L_nogu")
    gu_loads()
    lab("L_nogu")
    C("tail addresses")
    vWA, vDA, vSA, vOA, vXW, vXR2, vHA = 220, 221, 222, 223, 224, 225, 226
    sWOo, sDNo, sSTo, sOPo, sOPo2, sH2o = 50, 52, 53, 54, 55, 56
    TW, TD = 168, 184
    A(f"v_lshlrev_b32 v{vT0}, 3, v{vN}")
    A(f"v_lshl_add_u32 v{vWA}, v{vSLAB}, 15, v{vT0}"); A(f"v_lshl_add_u32 v{vDA}, v{vSLAB}, 13, v{vT0}")
    A(f"s_lshl_b32 s{sWOo}, s{sH}, 17"); A(f"s_lshl_b32 s{t7}, s{sWID}, 11"); A(f"s_add_u32 s{sWOo}, s{sWOo}, s{t7}")
    A(f"s_lshl_b32 s{t7}, s{sCB}, 7"); A(f"s_add_u32 s{sWOo}, s{sWOo}, s{t7}")
    A(f"s_max_i32 s{sDNo}, s{sJB}, 0"); A(f"s_lshl_b32 s{sDNo}, s{sDNo}, 16"); A(f"s_add_u32 s{sDNo}, s{sDNo}, s{t7}")
    A(f"s_and_b32 s{t7}, s{sWID}, 1"); A(f"s_lshl_b32 s{t7}, s{t7}, 15"); A(f"s_add_u32 s{sDNo}, s{sDNo}, s{t7}")
    A(f"s_lshr_b32 s{t7}, s{sWID}, 1"); A(f"s_lshl_b32 s{t7}, s{t7}, 12"); A(f"s_add_u32 s{sDNo}, s{sDNo}, s{t7}")
    srd(rA, sWO, 0x400000)
    A(f"s_mov_b32 s{rB}, s{sDN}"); A(f"s_and_b32 s{rB+1}, s{sDN+1}, 0xffff"); A(f"s_mov_b32 s{rB+3}, 0x20000")
    A(f"s_cmp_lt_i32 s{sJB}, 0"); A(f"s_cselect_b32 s{rB+2}, 0, {1792*1024}")
    def tiles(where):
        n = 0
        if o['dn_at'] == where:
            for j in range(4): A(f"buffer_load_dwordx2 {R(TD+2*j,2)}, v{vDA}, {S4(rB)}, s{sDNo} offen offset:{1024*j} nt")
            n += 4
        if o['wo_at'] == where:
            for j in range(8):
                A(f"buffer_load_dwordx2 {R(TW+2*j,2)}, v{vWA}, {S4(rA)}, s{sWOo} offen offset:{1024*(j&1)} nt")
                if j & 1 and j < 7: A(f"s_add_u32 s{sWOo}, s{sWOo}, 8192")
            n += 8
        return n
    tiles("mid")
    A(f"v_and_b32 v{vT0}, 7, v{vN}"); A(f"v_lshlrev_b32 v{vT0}, 4, v{vT0}"); A(f"v_lshl_add_u32 v{vSA}, v{vSLAB}, 7, v{vT0}")
    A(f"s_lshl_b32 s{sSTo}, s{sH}, 9"); A(f"s_add_u32 s{sSTo}, s{sSTo}, {WS_ST}")
    A(f"v_lshlrev_b32 v{vOA}, 4, v0")
    A(f"s_lshl_b32 s{sOPo}, s{sH}, 14"); A(f"s_lshl_b32 s{t7}, s{sWID}, 12"); A(f"s_add_u32 s{sOPo}, s{sOPo}, s{t7}"); A(f"s_add_u32 s{sOPo}, s{sOPo}, {WS_OP}")
    A(f"s_lshl_b32 s{t7}, s{sWID}, 10"); A(f"s_add_u32 s{t7}, s{t7}, {L_X}"); A(f"v_lshl_add_u32 v{vXW}, v0, 4, s{t7}")
    A(f"s_lshl_b32 s{t7}, s{sWID}, 9"); A(f"s_add_u32 s{t7}, s{t7}, {L_X}"); A(f"v_lshl_add_u32 v{vXR2}, v0, 3, s{t7}")
    A(f"v_lshrrev_b32 v{vT0}, 5, v0"); A(f"v_lshlrev_b32 v{vT0}, 17, v{vT0}")
    A(f"v_bfe_u32 v{vT1}, v0, 2, 3"); A(f"v_lshl_add_u32 v{vT0}, v{vT1}, 11, v{vT0}")
    A(f"v_and_b32 v{vT1}, 3, v0"); A(f"v_lshl_add_u32 v{vHA}, v{vT1}, 4, v{vT0}")
    A(f"s_lshl_b32 s{sH2o}, s{sWID}, 18"); A(f"s_lshl_b32 s{t7}, s{sCB}, 14"); A(f"s_add_u32 s{sH2o}, s{sH2o}, s{t7}")
    A(f"s_lshl_b32 s{t7}, s{sH}, 6"); A(f"s_add_u32 s{sH2o}, s{sH2o}, s{t7}"); A(f"s_add_u32 s{sH2o}, s{sH2o}, {WS_H2}")
    C("wait K_w landed and all q heads")
    A(f"s_lshl_b32 s{t1}, 1, s{sWID}"); A(f"s_or_b32 s{t1}, s{t1}, 0xf0")
    lds_spin("kq", vFL, vT0, f"s{t1}")
    A(f"v_readlane_b32 s{sMODE}, v{vT0}, 4"); A(f"s_and_b32 s{sMODE}, s{sMODE}, 2")
    stamp(4)
    QM = 8
    KF = 72
    vQA = 140
    A(f"v_and_b32 v{vT0}, 3, v{vN}"); A(f"v_mul_u32_u24 v{vT0}, 320, v{vT0}"); A(f"v_lshl_add_u32 v{vT0}, v{vSLAB}, 4, v{vT0}")
    A(f"v_add_u32 v{vT1}, {L_Q}, v{vT0}")
    A(f"v_lshrrev_b32 v{vT2}, 2, v{vN}")
    A(f"v_mov_b32 v{vQA+4}, {L_Z}")
    for u in range(4):
        A(f"v_cmp_eq_u32 vcc, {u}, v{vT2}"); nop(2)
        A(f"v_cndmask_b32 v{vQA+u}, v{vQA+4}, v{vT1}, vcc")
    for u in range(4):
        for c in range(4): A(f"ds_read_b128 {R(QM+16*u+4*c,4)}, v{vQA+u} offset:{64*c}")
        if u == 1: A("s_waitcnt lgkmcnt(4)")
    vKA = 146
    A(f"v_and_b32 v{vT1}, 3, v{vN}"); A(f"v_lshl_add_u32 v{vT1}, v{vT1}, 2, v{vT2}"); A(f"v_lshlrev_b32 v{vT1}, 8, v{vT1}")
    A(f"s_lshl_b32 s{t1}, s{sWID}, 15"); A(f"v_add_u32 v{vT1}, s{t1}, v{vT1}")
    A(f"v_xor_b32 v{vT2}, v{vSLAB}, v{vN}")
    for c in range(4):
        A(f"v_xor_b32 v{vKA+c}, {4*c}, v{vT2}"); A(f"v_lshl_add_u32 v{vKA+c}, v{vKA+c}, 4, v{vT1}")
    SD = 152
    def kread(i):
        gi, c = i >> 2, i & 3
        A(f"ds_read_b128 {R(KF+4*(i&15),4)}, v{vKA+c} offset:{gi*4096}")
    A("s_waitcnt lgkmcnt(0)")
    for i in range(12): kread(i)
    for i in range(32):
        gi, c = i >> 2, i & 3
        u, jh = gi >> 1, gi & 1
        outstanding = min(32, i + 12) - i - 1
        A(f"s_waitcnt lgkmcnt({outstanding})")
        first = (u == 0 and c == 0)
        A(f"v_mfma_f32_16x16x32_bf16 {R(SD+4*jh,4)}, {R(KF+4*(i&15),4)}, {R(QM+16*u+4*c,4)}, {'0' if first else R(SD+4*jh,4)}")
        if i + 12 < 32: kread(i + 12)
    nop(8)
    C("scores: round to bf16, scale, round; softmax numerator")
    SP = 160
    A(f"s_mov_b32 s{t1}, {hex(f2u(128**-0.5))}"); A(f"s_mov_b32 s{t7}, {LOG2E}")
    for i in range(4): A(f"v_cvt_pk_bf16_f32 v{SP+i}, v{SD+2*i}, v{SD+2*i+1}")
    for i in range(4):
        A(f"v_lshlrev_b32 v{SD+2*i}, 16, v{SP+i}"); A(f"v_and_b32 v{SD+2*i+1}, 0xffff0000, v{SP+i}")
    for i in range(8): A(f"v_mul_f32 v{SD+i}, s{t1}, v{SD+i}")
    for i in range(4): A(f"v_cvt_pk_bf16_f32 v{SP+i}, v{SD+2*i}, v{SD+2*i+1}")
    for i in range(4):
        A(f"v_lshlrev_b32 v{SD+2*i}, 16, v{SP+i}"); A(f"v_and_b32 v{SD+2*i+1}, 0xffff0000, v{SP+i}")
    MX, SM = 164, 165
    A(f"v_max3_f32 v{MX}, v{SD}, v{SD+1}, v{SD+2}"); A(f"v_max3_f32 v{SM}, v{SD+3}, v{SD+4}, v{SD+5}")
    A(f"v_max3_f32 v{MX}, v{MX}, v{SD+6}, v{SD+7}"); A(f"v_max_f32 v{MX}, v{MX}, v{SM}")
    dpp_op("v_max_f32", MX, "row_ror:4"); dpp_op("v_max_f32", MX, "row_ror:8")
    xsum_slabs(MX, vT0, "v_max_f32")
    for i in range(8): A(f"v_sub_f32 v{SD+i}, v{SD+i}, v{MX}")
    for i in range(8): A(f"v_mul_f32 v{SD+i}, s{t7}, v{SD+i}")
    for i in range(8): A(f"v_exp_f32 v{SD+i}, v{SD+i}")
    nop(1)
    for i in range(4): A(f"v_cvt_pk_bf16_f32 v{SP+i}, v{SD+2*i}, v{SD+2*i+1}")
    A(f"v_add_f32 v{SM}, v{SD}, v{SD+1}"); A(f"v_add_f32 v{vT0}, v{SD+2}, v{SD+3}")
    A(f"v_add_f32 v{vT1}, v{SD+4}, v{SD+5}"); A(f"v_add_f32 v{vT2}, v{SD+6}, v{SD+7}")
    A(f"v_add_f32 v{SM}, v{SM}, v{vT0}"); A(f"v_add_f32 v{vT1}, v{vT1}, v{vT2}"); A(f"v_add_f32 v{SM}, v{SM}, v{vT1}")
    A(f"v_and_b32 v{vT0}, 3, v{vN}"); A(f"v_mul_u32_u24 v{vT1}, 320, v{vT0}"); A(f"v_lshl_add_u32 v{vT1}, v{vSLAB}, 4, v{vT1}")
    A(f"v_and_b32 v{vT2}, 12, v{vN}"); A(f"v_lshl_add_u32 v{vT1}, v{vT2}, 4, v{vT1}")
    A(f"s_mul_i32 s{t1}, s{sWID}, 1280"); A(f"s_add_u32 s{t1}, s{t1}, {L_P}"); A(f"v_add_u32 v{vT1}, s{t1}, v{vT1}")
    A(f"ds_write_b128 v{vT1}, {R(SP,4)}")
    dpp_op("v_add_f32", SM, "row_ror:4"); dpp_op("v_add_f32", SM, "row_ror:8")
    xsum_slabs(SM, vT2)
    A(f"s_lshl_b32 s{t1}, s{sWID}, 2"); A(f"s_add_u32 s{t1}, s{t1}, {L_ST}"); A(f"v_lshl_add_u32 v{vT1}, v{vT0}, 4, s{t1}")
    A(f"s_lshl_b32 s{t1}, s{sWID}, 4"); A(f"s_add_u32 s{t1}, s{t1}, {L_MW}"); A(f"v_lshl_add_u32 v{vT2}, v{vT0}, 2, s{t1}")
    A(f"ds_write_b32 v{vT1}, v{MX}"); A(f"ds_write_b32 v{vT1}, v{SM} offset:64"); A(f"ds_write_b32 v{vT2}, v{MX}")
    A(f"s_lshl_b32 s{t1}, s{sWID}, 2"); A(f"s_add_u32 s{t1}, s{t1}, {L_F+36}")
    A(f"v_mov_b32 v{SD}, s{t1}"); A(f"v_mov_b32 v{SD+1}, 1")
    A("s_waitcnt lgkmcnt(0)")
    A(f"ds_write_b32 v{SD}, v{SD+1}")
    stamp(5)
    A(f"s_cmp_eq_u32 s{sWID}, 3"); A("s_cbranch_scc0 L_nostat")
    C("wave 3: WG-level softmax stats publish")
    lds_spin("st", vFL, vT0, "0x1e00")
    A(f"v_and_b32 v{vT0}, 3, v0"); A(f"v_lshlrev_b32 v{vT0}, 4, v{vT0}"); A(f"v_add_u32 v{vT1}, {L_ST}, v{vT0}")
    A(f"ds_read_b128 {R(8,4)}, v{vT1}"); A(f"ds_read_b128 {R(12,4)}, v{vT1} offset:64")
    A(f"s_mov_b32 s{t7}, {LOG2E}")
    A("s_waitcnt lgkmcnt(0)")
    A("v_max3_f32 v16, v8, v9, v10"); A("v_max_f32 v16, v16, v11")
    for i in range(4): A(f"v_sub_f32 v{8+i}, v{8+i}, v16")
    for i in range(4): A(f"v_mul_f32 v{8+i}, s{t7}, v{8+i}")
    for i in range(4): A(f"v_exp_f32 v{8+i}, v{8+i}")
    A(f"v_mov_b32 v17, s{sTAG}"); A(f"v_mov_b32 v19, s{sTAG}")
    A("v_mul_f32 v18, v8, v12")
    for i in range(1, 4): A(f"v_fmac_f32 v18, v{8+i}, v{12+i}")
    A(f"v_lshlrev_b32 v{vT0}, 5, v{vT0}")
    A(f"s_lshl_b32 s{t7}, s{sHKV}, 11"); A(f"s_lshl_b32 s{t1}, s{sR}, 4"); A(f"s_add_u32 s{t7}, s{t7}, s{t1}"); A(f"s_add_u32 s{t7}, s{t7}, {WS_ST}")
    A("s_mov_b64 exec, 15")
    store_mode("st", f"buffer_store_dwordx4 v[16:19], v{vT0}, {S4(rWS)}, s{t7} offen")
    A("s_mov_b64 exec, -1")
    lab("L_nostat")
    C("g/u check + FFN hidden activations")
    AH = 218
    A(f"v_mov_b32 v{AH}, 0"); A(f"v_mov_b32 v{AH+1}, 0")
    if o.get('nogu'): A("s_branch L_noffn")
    A(f"s_cmp_lt_i32 s{sJB}, 0"); A("s_cbranch_scc1 L_noffn")
    A(f"s_mov_b32 s{sSPIN}, 0")
    nmid = (4 if o['dn_at'] == "mid" else 0) + (8 if o['wo_at'] == "mid" else 0)
    A(f"s_cmp_eq_u32 s{sWID}, 3"); A("s_cbranch_scc1 L_guw3")
    A(f"s_waitcnt vmcnt({nmid})"); A("s_branch L_gupoll")
    lab("L_guw3")
    A(f"s_waitcnt vmcnt({nmid+1})")
    lab("L_gupoll")
    for k in range(2): A(f"v_bitop3_b32 v{GU+4*k+1}, v{GU+4*k+1}, v{GU+4*k+3}, s{sTAG} bitop3:0x7e")
    A(f"v_or_b32 v{GU+1}, v{GU+1}, v{GU+5}")
    A(f"v_cmp_ne_u32 vcc, 0, v{GU+1}")
    A("s_cbranch_vccz L_guok")
    A(f"s_add_u32 s{sSPIN}, s{sSPIN}, 1"); A(f"s_cmp_lt_u32 s{sSPIN}, {SPIN_MAX}"); A("s_cbranch_scc0 L_guok")
    gu_loads()
    A("s_waitcnt vmcnt(0)")
    A("s_branch L_gupoll")
    lab("L_guok")
    vals = [GU + 2*i for i in range(4)]
    GG, UU = 208, 212
    for v in vals: A(f"v_mov_b32 v{v+1}, v{v}")
    for v in vals: A(f"v_permlane16_swap_b32 v{v}, v{v+1}")
    for i, v in enumerate(vals): A(f"v_add_f32 v{GG+i}, v{v}, v{v+1}")
    for i in range(4): A(f"v_cvt_pk_bf16_f32 v{GG+i}, v{GG+i}, v{GG+i}")
    for i in range(4): A(f"v_and_b32 v{GG+i}, 0xffff0000, v{GG+i}")
    for i in range(4): A(f"v_mov_b32 v{UU+i}, v{GG+i}")
    for i in range(4): A(f"v_permlane32_swap_b32 v{GG+i}, v{UU+i}")
    A(f"s_mov_b32 s{t7}, {hex(f2u(-1.4426950408889634))}")
    for i in range(4): A(f"v_mul_f32 v{vals[i]}, s{t7}, v{GG+i}")
    for i in range(4): A(f"v_exp_f32 v{vals[i]}, v{vals[i]}")
    nop(1)
    for i in range(4): A(f"v_add_f32 v{vals[i]}, 1.0, v{vals[i]}")
    for i in range(4): A(f"v_rcp_f32 v{vals[i]}, v{vals[i]}")
    nop(1)
    for i in range(4): A(f"v_mul_f32 v{GG+i}, v{GG+i}, v{vals[i]}")
    for i in range(4): A(f"v_cvt_pk_bf16_f32 v{GG+i}, v{GG+i}, v{GG+i}")
    for i in range(4): A(f"v_and_b32 v{GG+i}, 0xffff0000, v{GG+i}")
    for i in range(4): A(f"v_mul_f32 v{GG+i}, v{GG+i}, v{UU+i}")
    A(f"v_and_b32 v{vT0}, 3, v0"); A(f"v_cmp_eq_u32 vcc, v{vT0}, v{vSLAB}")
    A(f"v_cvt_pk_bf16_f32 v{GG}, v{GG}, v{GG+1}"); A(f"v_cvt_pk_bf16_f32 v{GG+1}, v{GG+2}, v{GG+3}")
    A(f"v_cndmask_b32 v{AH}, v{AH}, v{GG}, vcc"); A(f"v_cndmask_b32 v{AH+1}, v{AH+1}, v{GG+1}, vcc")
    lab("L_noffn")
    if o['pt']:
        C("wave 1: bring this WG's share of the O hand-off lines into L2")
        A(f"s_cmp_eq_u32 s{sWID}, 1"); A("s_cbranch_scc0 L_nopt")
        A(f"v_lshlrev_b32 v{vT0}, 5, v0"); A(f"s_lshl_b32 s{t7}, s{sCB}, 11"); A(f"s_add_u32 s{t7}, s{t7}, s{sOPo}"); A(f"s_sub_u32 s{t7}, s{t7}, 4096")
        A(f"buffer_load_dword v230, v{vT0}, {S4(rWS)}, s{t7} offen{HOF}")
        lab("L_nopt")
    if o.get('vall'): lds_spin("v", vFL, vT0, "0xf0000")
    else:
        A(f"s_lshl_b32 s{t1}, 0x10000, s{sWID}")
        lds_spin("v", vFL, vT0, f"s{t1}")
    stamp(6)
    SG, OG = 48, 52
    BW, BD, DF, DD, ACC, vW = 72, 88, 96, 112, 144, 148
    def st_load(): A(f"buffer_load_dwordx4 {R(SG,4)}, v{vSA}, {S4(rWS)}, s{sSTo} offen{HOF}")
    def o_loads(p):
        A(f"buffer_load_dwordx4 {R(OG+8*p,4)}, v{vOA}, {S4(rWS)}, s{sOPo} offen offset:{2048*p}{HOF}")
        A(f"buffer_load_dwordx4 {R(OG+8*p+4,4)}, v{vOA}, {S4(rWS)}, s{sOPo} offen offset:{2048*p+1024}{HOF}")
    st_load()
    nb2 = tiles("b2")
    A("s_barrier")
    stamp(7)
    if o.get('b3delay'): A(f"s_sleep {o['b3delay']}")
    nb3 = tiles("b3")
    if o['oearly']: A(f"s_sleep {o['oearly']}")
    o_loads(0); o_loads(1)
    A(f"s_mov_b32 s{sSPIN}, 0")
    A(f"s_waitcnt vmcnt({nb2+nb3+4})")
    lab("L_stpoll")
    A(f"v_bitop3_b32 v{SG+1}, v{SG+1}, v{SG+3}, s{sTAG} bitop3:0x7e")
    A(f"v_cmp_ne_u32 vcc, 0, v{SG+1}")
    A("s_cbranch_vccz L_stok")
    A(f"s_add_u32 s{sSPIN}, s{sSPIN}, 1"); A(f"s_cmp_lt_u32 s{sSPIN}, {SPIN_MAX}"); A("s_cbranch_scc0 L_stok")
    st_load()
    A("s_waitcnt vmcnt(0)")
    A("s_branch L_stpoll")
    lab("L_stok")
    stamp(14)
    A(f"s_mov_b32 s{t7}, {LOG2E}")
    A(f"v_mov_b32 v{SG+1}, v{SG}")
    dpp_op("v_max_f32", SG+1, "quad_perm:[1,0,3,2]"); dpp_op("v_max_f32", SG+1, "quad_perm:[2,3,0,1]"); dpp_op("v_max_f32", SG+1, "row_ror:4")
    A(f"v_sub_f32 v{SG}, v{SG}, v{SG+1}"); A(f"v_mul_f32 v{SG}, s{t7}, v{SG}"); A(f"v_exp_f32 v{SG}, v{SG}"); nop(1)
    A(f"v_mul_f32 v{SG+2}, v{SG}, v{SG+2}")
    dpp_op("v_add_f32", SG+2, "quad_perm:[1,0,3,2]"); dpp_op("v_add_f32", SG+2, "quad_perm:[2,3,0,1]"); dpp_op("v_add_f32", SG+2, "row_ror:4")
    A(f"v_rcp_f32 v{SG+2}, v{SG+2}"); nop(1)
    A(f"v_mul_f32 v{vW}, v{SG}, v{SG+2}")
    A("s_waitcnt vmcnt(4)")
    stamp(13)
    for e in range(4):
        for i in range(2):
            A(f"v_perm_b32 v{BD+2*e+i}, v{TD+2*(2*i+1)+(e>>1)}, v{TD+2*(2*i)+(e>>1)}, s{sHI if e&1 else sLO}")
    order = [0, 2, 1, 3]
    for e in range(4):
        for i in range(4):
            pr = order[i]
            A(f"v_perm_b32 v{BW+4*e+i}, v{TW+2*(2*pr+1)+(e>>1)}, v{TW+2*(2*pr)+(e>>1)}, s{sHI if e&1 else sLO}")
        A(f"v_mfma_f32_16x16x16_bf16 {R(DF+4*e,4)}, {R(AH,2)}, {R(BD+2*e,2)}, 0")
    nop(8)
    for e in range(4): A(f"v_add_f32 v{ACC+e}, v{DF+4*e}, v{DF+4*e+1}")
    for e in range(4): A(f"v_add_f32 v{DF+4*e+2}, v{DF+4*e+2}, v{DF+4*e+3}")
    for e in range(4): A(f"v_add_f32 v{ACC+e}, v{ACC+e}, v{DF+4*e+2}")
    C("O partial gather (retry only the lanes still missing)")
    A(f"s_mov_b32 s{sSPIN}, 0")
    lab("L_opoll")
    A("s_waitcnt vmcnt(0)")
    for p, mk in ((0, mA), (1, mB)):
        A(f"v_bitop3_b32 v{vT0}, v{OG+8*p+1}, v{OG+8*p+3}, s{sTAG} bitop3:0x7e")
        A(f"v_bitop3_b32 v{vT1}, v{OG+8*p+5}, v{OG+8*p+7}, s{sTAG} bitop3:0x7e")
        A(f"v_or_b32 v{vT0}, v{vT0}, v{vT1}")
        A(f"v_cmp_ne_u32 s[{mk}:{mk+1}], 0, v{vT0}")
    A(f"s_or_b64 s[{mC}:{mC+1}], s[{mA}:{mA+1}], s[{mB}:{mB+1}]")
    A("s_cbranch_scc0 L_ook")
    A(f"s_add_u32 s{sSPIN}, s{sSPIN}, 1"); A(f"s_cmp_lt_u32 s{sSPIN}, {SPIN_MAX}"); A("s_cbranch_scc0 L_ook")
    if o['sleep_o']: A(f"s_sleep {o['sleep_o']}")
    A(f"s_mov_b64 exec, s[{mA}:{mA+1}]"); A("s_cbranch_execz L_o1")
    o_loads(0)
    lab("L_o1")
    A(f"s_mov_b64 exec, s[{mB}:{mB+1}]"); A("s_cbranch_execz L_o2")
    o_loads(1)
    lab("L_o2")
    A("s_mov_b64 exec, -1")
    A("s_branch L_opoll")
    lab("L_ook")
    stamp(8)
    for p in range(2):
        A(f"v_mov_b32 v{OG+8*p+1}, v{OG+8*p+4}"); A(f"v_mov_b32 v{OG+8*p+3}, v{OG+8*p+6}")
    nop(1)
    for p in range(2):
        for e in range(4):
            A(f"v_mfma_f32_16x16x32_bf16 {R(DD+16*p+4*e,4)}, {R(OG+8*p,4)}, {R(BW+4*e,4)}, 0")
    nop(1)
    for p in range(2):
        for r in range(4):
            for e in range(4):
                A(f"v_fmac_f32_dpp v{ACC+e}, v{vW}, v{DD+16*p+4*e+r} row_newbcast:{4*p+r} {DPP}")
    A(f"ds_write_b128 v{vXW}, {R(ACC,4)}")
    A("s_waitcnt lgkmcnt(0)")
    A("s_barrier")
    A(f"s_cmp_ge_u32 s{sWID}, 2"); A("s_cbranch_scc1 L_final")
    for k in range(4): A(f"ds_read_b64 {R(8+2*k,2)}, v{vXR2} offset:{1024*k}")
    A(f"v_mov_b32 v17, s{sTAG}"); A(f"v_mov_b32 v19, s{sTAG}")
    A("s_waitcnt lgkmcnt(2)"); A("v_pk_add_f32 v[8:9], v[8:9], v[10:11]")
    A("s_waitcnt lgkmcnt(0)"); A("v_pk_add_f32 v[12:13], v[12:13], v[14:15]")
    A("v_add_f32 v16, v8, v12"); A("v_add_f32 v18, v9, v13")
    A(f"buffer_store_dwordx4 v[16:19], v{vHA}, {S4(rWS)}, s{sH2o} offen{HSF}")
    if stamps:
        stamp(9)
        A(f"s_cmp_eq_u32 s{sWID}, 0"); A("s_cbranch_scc1 L_wstamp0")
    A("s_endpgm")
    lab("L_final")
    A(f"s_cmp_eq_u32 s{sWID}, 2"); A("s_cbranch_scc0 L_end")
    C("final reduction over heads for 8 outputs")
    srd(rB, sOUT, 4096)
    sRo = t0
    A(f"s_lshl_b32 s{sRo}, s2, 11"); A(f"s_add_u32 s{sRo}, s{sRo}, {WS_H2}")
    A(f"v_lshlrev_b32 v{vT1}, 4, v0")
    A(f"s_mov_b32 s{sSPIN}, 0")
    if o['delay_h2']: A(f"s_sleep {o['delay_h2']}")
    lab("L_hpoll")
    A(f"buffer_load_dwordx4 v[8:11], v{vT1}, {S4(rWS)}, s{sRo} offen{HLF}")
    A(f"buffer_load_dwordx4 v[12:15], v{vT1}, {S4(rWS)}, s{sRo} offen offset:1024{HLF}")
    A("s_waitcnt vmcnt(0)")
    A(f"v_bitop3_b32 v9, v9, v11, s{sTAG} bitop3:0x7e"); A(f"v_bitop3_b32 v13, v13, v15, s{sTAG} bitop3:0x7e")
    A("v_or_b32 v9, v9, v13")
    A("v_cmp_ne_u32 vcc, 0, v9")
    A("s_cbranch_vccz L_hok")
    if o['sleep_h2']: A(f"s_sleep {o['sleep_h2']}")
    A(f"s_add_u32 s{sSPIN}, s{sSPIN}, 1"); A(f"s_cmp_lt_u32 s{sSPIN}, {SPIN_MAX}"); A("s_cbranch_scc1 L_hpoll")
    lab("L_hok")
    A("v_add_f32 v8, v8, v12"); A("v_add_f32 v10, v10, v14")
    nop(1)
    for ctl in ("row_ror:4", "row_ror:8"):
        A(f"v_add_f32_dpp v8, v8, v8 {ctl} {DPP}"); A(f"v_add_f32_dpp v10, v10, v10 {ctl} {DPP}"); nop(1)
    for sw in ("v_permlane16_swap_b32", "v_permlane32_swap_b32"):
        A("v_mov_b32 v9, v8"); A("v_mov_b32 v11, v10"); nop(2)
        A(f"{sw} v8, v9"); A(f"{sw} v10, v11"); nop(1)
        A("v_add_f32 v8, v8, v9"); A("v_add_f32 v10, v10, v11")
    A(f"v_lshlrev_b32 v12, 16, v{vXR}"); A(f"v_and_b32 v13, 0xffff0000, v{vXR}")
    A("v_add_f32 v8, v8, v12"); A("v_add_f32 v10, v10, v13")
    A("v_cvt_pk_bf16_f32 v8, v8, v10")
    A(f"s_lshl_b32 s{t1}, s2, 4")
    A("v_and_b32 v14, 3, v0"); A("v_lshlrev_b32 v14, 2, v14")
    A("s_mov_b64 exec, 15")
    A(f"buffer_store_dword v8, v14, {S4(rB)}, s{t1} offen")
    A("s_cmp_eq_u32 s2, 0"); A("s_cbranch_scc0 L_noep")
    C("advance the hand-off epoch (every workgroup has read it by now)")
    A("s_mov_b64 exec, 1")
    A(f"s_add_u32 s{t1}, s{sEP}, 1")
    A(f"v_mov_b32 v9, s{t1}"); A("v_mov_b32 v10, 0")
    A(f"buffer_store_dword v9, v10, {S4(rWS)}, 0 offen offset:{WS_EPOCH} sc1")
    lab("L_noep")
    if stamps:
        stamp(10)
        stamps_to_lds([(10, 10)])
        A("s_sleep 8")
        A(f"s_add_u32 s{t2}, s{sWS}, 0x10000000"); A(f"s_addc_u32 s{t3}, s{sWS+1}, 0")
        A(f"v_lshlrev_b32 v6, 2, v0"); A(f"v_add_u32 v7, {L_S}, v6"); A("ds_read_b32 v8, v7")
        A(f"s_lshl_b32 s{t1}, s2, 8"); A(f"v_add_u32 v6, s{t1}, v6")
        A("s_waitcnt lgkmcnt(0)")
        A(f"global_store_dword v6, v8, s[{t2}:{t3}]")
    A("s_endpgm")
    if stamps:
        lab("L_wstamp0")
        stamps_to_lds([(i, i) for i in range(10)] + [(11, 18), (12, 19), (13, 20), (14, 21)])
        A("s_endpgm")

    L.append(".p2align 6")
    lab("L_att")
    C("---- attention waves 4..7")
    sAW, sBASE, sBLK, sLB = t0, t1, t2, t3
    VV, PA, PT, XX, YY = 128, 64, 24, 8, 12
    A(f"s_sub_u32 s{sAW}, s{sWID}, 4")
    A(f"s_and_b32 s{sBASE}, s{sR}, 24"); A(f"s_add_u32 s{sBASE}, s{sBASE}, s{sHKV}"); A(f"s_lshl_b32 s{sBASE}, s{sBASE}, 22")
    A(f"s_and_b32 s{t4}, s{sR}, 7"); A(f"s_lshl_b32 s{t4}, s{t4}, 17"); A(f"s_add_u32 s{sBASE}, s{sBASE}, s{t4}"); A(f"s_add_u32 s{sBASE}, s{sBASE}, {12288*256}")
    A(f"s_add_u32 s{sBLK}, s{sR}, s{sAW}")
    if o['rotx']:
        A(f"s_mul_i32 s{t4}, s{sHKV}, {o['rotx']}"); A(f"s_add_u32 s{sBLK}, s{sBLK}, s{t4}")
    A(f"s_lshl_b32 s{sBLK}, s{sBLK}, 12")
    A(f"s_lshl_b32 s{sLB}, s{sAW}, 15")
    sKW = sH
    wk = o['wk']
    A(f"s_and_b32 s{sJB}, s{sR}, 24"); A(f"s_add_u32 s{sJB}, s{sJB}, s{sHKV}"); A(f"s_sub_u32 s{sJB}, s{sJB}, 4")
    A(f"s_mov_b32 s{sKW}, {wk[2]}")
    A(f"s_and_b32 s{t4}, s{sJB}, 3"); A(f"s_and_b32 s{t5}, s{sR}, 4"); A(f"s_or_b32 s{t4}, s{t4}, s{t5}")
    A(f"s_cmp_eq_u32 s{t4}, 7"); A(f"s_cselect_b32 s{sKW}, {wk[3]}, s{sKW}")
    A(f"s_cmp_eq_u32 s{t5}, 0"); A(f"s_cselect_b32 s{t4}, {wk[1]}, {wk[0]}")
    A(f"s_cmp_lt_i32 s{sJB}, 0"); A(f"s_cselect_b32 s{sKW}, s{t4}, s{sKW}")
    A(f"s_lshr_b32 s{t4}, s{sR}, 1"); A(f"s_cmp_eq_u32 s{t4}, 5"); A(f"s_cselect_b32 s{sKW}, {wk[4]}, s{sKW}")
    A(f"v_lshlrev_b32 v4, 2, v{vSLAB}"); A(f"v_xor_b32 v4, v4, v{vN}"); A(f"v_lshlrev_b32 v5, 8, v{vSLAB}")
    for a in range(4):
        A(f"v_xor_b32 v{16+a}, {a}, v4"); A(f"v_lshl_add_u32 v{16+a}, v{16+a}, 4, v5")
    A("v_lshlrev_b32 v20, 4, v0")
    A(f"s_lshl_b32 s{t4}, s{sAW}, 2"); A(f"s_add_u32 s{t4}, s{t4}, {L_F}"); A(f"v_mov_b32 v21, s{t4}"); A("v_mov_b32 v22, 1")
    A("s_waitcnt lgkmcnt(0)")
    srd(rA, sK, 0x8000000); srd(rB, sV, 0x8000000)
    load_epoch()
    A(f"s_mov_b32 s{t5}, s{sBLK}"); A(f"s_mov_b32 m0, s{sLB}"); A(f"s_add_u32 s{t6}, s{sLB}, 32768")
    stamp(6)
    A("s_barrier")
    wins = o['wk']
    uniq = sorted(set(wins))
    if len(uniq) > 1:
        for w_ in uniq[1:]:
            A(f"s_cmp_eq_u32 s{sKW}, {w_}"); A(f"s_cbranch_scc1 L_kloop{w_}")
    for w_ in uniq:
        lab(f"L_kloop{w_}")
        A(f"s_and_b32 s{t4}, s{t5}, 0x1ffff"); A(f"s_add_u32 s{t4}, s{t4}, s{sBASE}")
        for a in range(4):
            if w_: A(f"s_waitcnt vmcnt({w_-1})")
            A(f"buffer_load_dwordx4 v{16+a}, {S4(rA)}, s{t4} offen offset:{1024*a}{KVF} lds")
        A(f"s_add_u32 s{t5}, s{t5}, 16384"); A("s_add_u32 m0, m0, 4096")
        A(f"s_cmp_lt_u32 m0, s{t6}"); A(f"s_cbranch_scc1 L_kloop{w_}")
        if w_ != uniq[-1]: A("s_branch L_kdone")
    lab("L_kdone")
    stamp(1)
    FS = 56
    vFA, vOW, vOR, vOS = 60, 61, 62, 63
    def setup1():
        srd(rWS, sWS, WS_END)
        A(f"v_and_b32 v4, 3, v{vN}"); A("v_mul_u32_u24 v4, 320, v4"); A(f"v_lshl_add_u32 v4, v{vSLAB}, 4, v4")
        A(f"s_mul_i32 s{t6}, s{sAW}, 1280"); A(f"s_add_u32 s{t6}, s{t6}, {L_P}"); A(f"v_add_u32 v4, s{t6}, v4")
        A(f"v_lshrrev_b32 v5, 2, v{vN}"); A(f"v_mov_b32 v6, {L_Z}")
        for g in range(4):
            A(f"v_cmp_eq_u32 vcc, {g}, v5"); nop(2); A(f"v_cndmask_b32 v{16+g}, v6, v4, vcc")
        A(f"v_mov_b32 v4, {L_MW}")
        A(f"s_lshl_b32 s{t6}, s{sAW}, 4"); A(f"s_add_u32 s{t6}, s{t6}, {L_MW}"); A(f"v_mov_b32 v5, s{t6}")
        A(f"v_lshlrev_b32 v{vFA}, 2, v{vN}"); A(f"v_add_u32 v{vFA}, {L_F}, v{vFA}")
    def setup2():
        A(f"s_lshl_b32 s{t6}, s{sAW}, 11"); A(f"s_add_u32 s{t6}, s{t6}, {L_O}"); A(f"v_lshl_add_u32 v{vOW}, v0, 3, s{t6}")
        A(f"s_lshl_b32 s{t6}, s{sAW}, 9"); A(f"s_add_u32 s{t6}, s{t6}, {L_O}"); A(f"v_lshl_add_u32 v{vOR}, v0, 4, s{t6}")
        A(f"s_lshl_b32 s{t5}, s{sHKV}, 2"); A(f"s_add_u32 s{t5}, s{t5}, s{sAW}"); A(f"s_lshl_b32 s{t5}, s{t5}, 14")
        A(f"s_bfe_u32 s{t6}, s{sR}, 0x10002"); A(f"s_lshl_b32 s{t6}, s{t6}, 11"); A(f"s_add_u32 s{t5}, s{t5}, s{t6}")
        A(f"s_lshr_b32 s{t6}, s{sR}, 3"); A(f"s_lshl_b32 s{t6}, s{t6}, 6"); A(f"s_add_u32 s{t5}, s{t5}, s{t6}")
        A(f"s_and_b32 s{t6}, s{sR}, 3"); A(f"s_lshl_b32 s{t6}, s{t6}, 4"); A(f"s_add_u32 s{t5}, s{t5}, s{t6}"); A(f"s_add_u32 s{t5}, s{t5}, {WS_OP}")
        A(f"v_bfe_u32 v{vOS}, v0, 3, 2"); A(f"v_lshlrev_b32 v{vOS}, 12, v{vOS}"); A("v_and_b32 v7, 1, v0"); A(f"v_lshl_add_u32 v{vOS}, v7, 10, v{vOS}")
        A("v_bfe_u32 v7, v0, 1, 2"); A(f"v_lshl_add_u32 v{vOS}, v7, 8, v{vOS}")
        A("s_waitcnt lgkmcnt(0)")
        make_tag()
    def p_fetch():
        lds_spin("p", vFA, 7, "0x1e00")
        A(f"v_readlane_b32 s{sMODE}, v7, 4")
        for k in range(4): A(f"ds_read_b128 {R(PT+4*k,4)}, v4 offset:{16*k}")
        A(f"ds_read_b128 {R(FS,4)}, v5")
        for u in range(2):
            for g in range(4): A(f"ds_read_b128 {R(PA+16*u+4*g,4)}, v{16+g} offset:{64*u}")
        A(f"s_and_b32 s{sMODE}, s{sMODE}, 2")
    def p_fetch2():
        A(f"s_mov_b32 s{t7}, {LOG2E}")
        A("s_waitcnt lgkmcnt(0)")
        for u in range(2, 4):
            for g in range(4): A(f"ds_read_b128 {R(PA+16*u+4*g,4)}, v{16+g} offset:{64*u}")
        for h in range(4): A(f"v_max3_f32 v{PT+h}, v{PT+h}, v{PT+4+h}, v{PT+8+h}")
        for h in range(4): A(f"v_max_f32 v{PT+h}, v{PT+h}, v{PT+12+h}")
        for h in range(4): A(f"v_sub_f32 v{FS+h}, v{FS+h}, v{PT+h}")
        for h in range(4): A(f"v_mul_f32 v{FS+h}, s{t7}, v{FS+h}")
        for h in range(4): A(f"v_exp_f32 v{FS+h}, v{FS+h}")
    def perm1(u, e, i):
        A(f"v_perm_b32 v{PT+4*e+i}, v{VV+4*(8*u+2*i+1)+(e>>1)}, v{VV+4*(8*u+2*i)+(e>>1)}, s{sHI if e&1 else sLO}")
    def mf(u, e):
        acc = YY if e & 1 else XX
        first = (u == 0 and e < 2)
        A(f"v_mfma_f32_16x16x32_bf16 {R(acc,4)}, {R(PA+16*u+4*(e>>1),4)}, {R(PT+4*e,4)}, {'0' if first else R(acc,4)}")
    def pv_chunk(u, e0):
        for i in range(4): perm1(u, e0, i)
        for e in range(e0+1, e0+4):
            for i in range(4): perm1(u, e, i)
            mf(u, e-1)
        nop(2); mf(u, e0+3)
    pc = o['pchk']
    chunks = {pc+2: (0, 0), pc+3: (0, 4), pc+4: (1, 0), pc+5: (1, 4), 30: (2, 0), 31: (2, 4)}
    assert pc + 5 < 30
    for i in range(32):
        if i % 4 == 0:
            A(f"s_and_b32 s{t4}, s{sBLK}, 0x1ffff"); A(f"s_add_u32 s{t4}, s{t4}, s{sBASE}"); A(f"s_add_u32 s{sBLK}, s{sBLK}, 16384")
        wv = o['wv'] if i < o['vfree'] else o['wv2']
        if wv: A(f"s_waitcnt vmcnt({wv-1})")
        A(f"buffer_load_dwordx4 {R(VV+4*i,4)}, v20, {S4(rB)}, s{t4} offen offset:{1024*(i&3)}{KVF}")
        if i + 1 == o['kwait']:
            A(f"s_waitcnt vmcnt({o['kwait']})"); A("ds_write_b32 v21, v22")
            stamp(2)
        if i == o.get('vflag', 31):
            A("ds_write_b32 v21, v22 offset:64")
            stamp(3)
        if i == 12: setup1()
        if i == 13: setup2()
        if i == pc: p_fetch()
        if i == pc + 1: p_fetch2()
        if i in chunks:
            u, e0 = chunks[i]
            if e0 == 0: A(f"s_waitcnt vmcnt({i-(8*u+7)}) lgkmcnt(0)")
            pv_chunk(u, e0)
    for i in range(3):
        A(f"s_waitcnt vmcnt({6-2*i})")
        for e in range(8): perm1(3, e, i)
    A("s_waitcnt vmcnt(0)")
    stamp(7)
    for e in range(3): perm1(3, e, 3)
    for e in range(8):
        mf(3, e)
        if e + 3 < 8: perm1(3, e+3, 3)
    stamp(4)
    nop(7)
    for h in range(4): A(f"v_mul_f32 v{PT+2*h}, v{XX+h}, v{FS+h}")
    for h in range(4): A(f"v_mul_f32 v{PT+2*h+1}, v{YY+h}, v{FS+h}")
    for h in range(4): A(f"ds_write_b64 v{vOW}, {R(PT+2*h,2)} offset:{512*h}")
    A("s_waitcnt lgkmcnt(0)")
    A("s_barrier")
    A("s_mov_b32 exec_hi, 0")
    for k in range(4): A(f"ds_read_b128 {R(PT+8+4*k,4)}, v{vOR} offset:{2048*k}")
    A(f"v_mov_b32 v{PT+1}, s{sTAG}"); A(f"v_mov_b32 v{PT+3}, s{sTAG}")
    A("s_waitcnt lgkmcnt(2)")
    A(f"v_pk_add_f32 {R(PT+8,2)}, {R(PT+8,2)}, {R(PT+12,2)}"); A(f"v_pk_add_f32 {R(PT+10,2)}, {R(PT+10,2)}, {R(PT+14,2)}")
    A("s_waitcnt lgkmcnt(0)")
    A(f"v_pk_add_f32 {R(PT+16,2)}, {R(PT+16,2)}, {R(PT+20,2)}"); A(f"v_pk_add_f32 {R(PT+18,2)}, {R(PT+18,2)}, {R(PT+22,2)}")
    A(f"v_pk_add_f32 {R(PT+8,2)}, {R(PT+8,2)}, {R(PT+16,2)}"); A(f"v_pk_add_f32 {R(PT+10,2)}, {R(PT+10,2)}, {R(PT+18,2)}")
    A(f"v_cvt_pk_bf16_f32 v{PT}, v{PT+8}, v{PT+9}"); A(f"v_cvt_pk_bf16_f32 v{PT+2}, v{PT+10}, v{PT+11}")
    store_mode("o", f"buffer_store_dwordx4 {R(PT,4)}, v{vOS}, {S4(rWS)}, s{t5} offen")
    if stamps:
        stamp(5)
        A(f"s_cmp_eq_u32 s{sWID}, 4"); A("s_cbranch_scc0 L_end")
        stamps_to_lds([(i, 10+i) for i in range(1, 8)])
    lab("L_end")
    A("s_endpgm")
    lab("L_codeend")
    L.append('.section .rodata,"a"'); L.append(".p2align 6"); L.append(f".amdhsa_kernel {NAME}_kernel")
    for s in ("next_free_vgpr 256", "next_free_sgpr 100", "accum_offset 256", "group_segment_fixed_size 0", "kernarg_size 96",
              "user_sgpr_count 2", "user_sgpr_kernarg_segment_ptr 1", "system_sgpr_workgroup_id_x 1",
              "float_denorm_mode_32 3", "float_denorm_mode_16_64 3"):
        L.append("  .amdhsa_" + s)
    L.append(".end_amdhsa_kernel")
    return "\n".join(L) + "\n"

if __name__ == "__main__":
    import json
    out = sys.argv[1]
    st = int(sys.argv[2]) if len(sys.argv) > 2 else 0
    opts = json.loads(sys.argv[3]) if len(sys.argv) > 3 else None
    open(out, "w").write(gen(st, opts))
```

```python
import sys, struct
NAME = "parallel_sum__sliding_block_cached__swiglu_ffn__decode"

def f2u(x): return struct.unpack("<I", struct.pack("<f", x))[0]
LOG2E = hex(f2u(1.4426950408889634))
TAGK, TAGC = 0x9E3779B1, 0x7F4A7C18

WS_EPOCH = 0
WS_QP = 0x1000
WS_GU = WS_QP + 256*1024
WS_PR = WS_GU + 224*1024
WS_ST = WS_PR + 32*1024
WS_OP = WS_ST + 16*1024
WS_H2 = WS_OP + 512*1024
WS_END = WS_H2 + 512*1024
L_K = 0
L_Q = 131072
L_Z = L_Q + 1280
L_F = L_Z + 256
L_ST = L_F + 128
L_MW = L_ST + 128
L_P = L_MW + 64
L_O = L_P + 4*1280
L_X = L_O + 8192
L_S = L_X + 4096
assert L_P % 16 == 0 and L_O % 16 == 0 and L_X % 16 == 0

SPIN_MAX = 1 << 16
REPUB_AT = 12

def gen(stamps=False, opts=None):
    o = dict(cpf='early', tlb=3, wk=[6,6,6,6,6], wv=6, wv2=6, vfree=32, pchk=19, kwait=7, rotx=0, sleep_q=1, sleep_o=0, sleep_h2=0, delay_h2=10, vall=1, wo_at="b2", dn_at="b2", pt=0, oearly=6)
    if opts: o.update(opts)
    L_END = L_S + (256 if stamps else 0)
    KVF = ' nt'; HOF = o.get('hof', ' sc1 nt')
    HLF = o.get('hlf', ' sc1'); HSF = o.get('hsf', ' sc1')
    L = []
    def A(s): L.append("    " + s)
    def lab(s): L.append(s + ":")
    def C(s): L.append("    ; " + s)
    def nop(n): A(f"s_nop {n-1}")
    DPP = "row_mask:0xf bank_mask:0xf"
    sX, sK, sV, sWQ, sWO, sG, sU, sDN, sOUT, sDBG, sWS = 4, 6, 8, 10, 12, 16, 18, 20, 22, 24, 26
    sWID, sHKV, sR, sTAG = 28, 29, 30, 31
    rWS, rA, rB = 32, 36, 40
    sLO, sHI = 44, 45
    sSPIN = 46
    sH, sCB, sJB = 47, 48, 49
    t0, t1, t2, t3, t4, t5, t6, t7 = 50, 51, 52, 53, 54, 55, 56, 57
    mA, mB, mC = 58, 60, 62
    sEP, sMODE, sPOFF, sPUB = 14, 15, 3, 64
    sSTL, sTAGX = 65, 66
    sST = 68
    def stamp(i):
        if stamps: A(f"s_memrealtime s[{sST+2*i}:{sST+2*i+1}]")
    def stamps_to_lds(pairs):
        A("s_mov_b64 exec, -1")
        A("s_waitcnt lgkmcnt(0)")
        A(f"v_mov_b32 v6, {L_S}")
        for i, slot in pairs:
            A(f"v_mov_b32 v8, s{sST+2*i}"); A(f"v_mov_b32 v9, s{sST+2*i+1}")
            A(f"ds_write_b64 v6, v[8:9] offset:{8*slot}"); nop(2)
        A("s_waitcnt lgkmcnt(0)")
    def srd(r, p, nrec):
        A(f"s_mov_b32 s{r}, s{p}"); A(f"s_and_b32 s{r+1}, s{p+1}, 0xffff")
        A(f"s_mov_b32 s{r+2}, {nrec}"); A(f"s_mov_b32 s{r+3}, 0x20000")
    def R(a, n): return f"v[{a}:{a+n-1}]"
    def S4(r): return f"s[{r}:{r+3}]"
    vSLAB, vN = 2, 3
    def load_epoch():
        A(f"s_load_dword s{sEP}, s[{sWS}:{sWS+1}], {WS_EPOCH}")
    def make_tag():
        A(f"s_mul_i32 s{sTAG}, s{sEP}, {hex(TAGK)}"); A(f"s_add_u32 s{sTAG}, s{sTAG}, {hex(TAGC)}"); A(f"s_andn2_b32 s{sTAG}, s{sTAG}, 7")
    def xsum_slabs(v, tmp, op="v_add_f32"):
        A(f"v_mov_b32 v{tmp}, v{v}"); nop(2)
        A(f"v_permlane16_swap_b32 v{v}, v{tmp}"); nop(1)
        A(f"{op} v{v}, v{v}, v{tmp}")
        A(f"v_mov_b32 v{tmp}, v{v}"); nop(2)
        A(f"v_permlane32_swap_b32 v{v}, v{tmp}"); nop(1)
        A(f"{op} v{v}, v{v}, v{tmp}")
    def dpp_op(op, v, ctl):
        nop(2); A(f"{op}_dpp v{v}, v{v}, v{v} {ctl} {DPP}")
    def bf16r(v):
        A(f"v_cvt_pk_bf16_f32 v{v}, v{v}, v{v}"); A(f"v_and_b32 v{v}, 0xffff0000, v{v}")
    def lds_spin(name, vaddr, vtmp, mask):
        A(f"s_mov_b32 s{sSPIN}, 0")
        lab(f"L_spin_{name}")
        A(f"ds_read_b32 v{vtmp}, v{vaddr}")
        A("s_waitcnt lgkmcnt(0)")
        A(f"v_cmp_ne_u32 vcc, 0, v{vtmp}")
        A(f"s_and_b32 s{t7}, vcc_lo, {mask}")
        A(f"s_cmp_eq_u32 s{t7}, {mask}")
        A(f"s_cbranch_scc1 L_spin_{name}_done")
        A(f"s_sleep {o.get('lsleep', 2)}")
        A(f"s_add_u32 s{sSPIN}, s{sSPIN}, 1")
        A(f"s_cmp_lt_u32 s{sSPIN}, {SPIN_MAX*8}")
        A(f"s_cbranch_scc1 L_spin_{name}")
        lab(f"L_spin_{name}_done")
    def store_mode(name, instr):
        A(f"s_cmp_eq_u32 s{sMODE}, 0"); A(f"s_cbranch_scc0 L_sm_{name}")
        A(instr); A(f"s_branch L_sm_{name}_done")
        lab(f"L_sm_{name}")
        A(instr + " sc1")
        lab(f"L_sm_{name}_done")

    L.append(f"; @launch grid=(256,1,1) block=(512,1,1) lds={L_END}")
    L.append('.amdgcn_target "amdgcn-amd-amdhsa--gfx950"')
    L.append(".text"); L.append(f".globl {NAME}_kernel")
    if o.get('al12', 1): L.append(".p2align 12")
    L.append(".p2align 8"); L.append(f".type {NAME}_kernel,@function")
    lab(f"{NAME}_kernel")
    A("s_load_dwordx16 s[4:19], s[0:1], 0")
    A("s_load_dwordx8 s[20:27], s[0:1], 64")
    stamp(0)
    if o.get('spf', 0):
        A(f"s_getpc_b64 s[{t6}:{t7}]")
        lab("L_pc0")
        for k in range(1, 1 + o.get('spf_n', 6)): A(f"s_load_dword s{98+(k&1)}, s[{t6}:{t7}], {128*k}")
        if o.get('spf_a', 3):
            A(f"s_add_u32 s{t6}, s{t6}, L_att-L_pc0"); A(f"s_addc_u32 s{t7}, s{t7}, 0")
        for k in range(o.get('spf_a', 3)): A(f"s_load_dword s{98+(k&1)}, s[{t6}:{t7}], {128*k}")
    A("v_lshrrev_b32 v1, 6, v0")
    A("v_and_b32 v0, 63, v0")
    A(f"s_and_b32 s{sHKV}, s2, 7")
    A(f"v_readfirstlane_b32 s{sWID}, v1")
    A(f"s_lshr_b32 s{sR}, s2, 3")
    A("s_cmp_ge_u32 s2, 256"); A("s_cbranch_scc1 L_end")
    A(f"v_lshrrev_b32 v{vSLAB}, 4, v0")
    A(f"v_and_b32 v{vN}, 15, v0")
    A(f"s_cmp_lt_u32 s{sWID}, 4"); A("s_cbranch_scc1 L_front")
    C("---- attention waves: start the K stream")
    sAW, sBASE, sBLK, sLB = t0, t1, t2, t3
    A(f"s_sub_u32 s{sAW}, s{sWID}, 4")
    A(f"s_and_b32 s{sBASE}, s{sR}, 24"); A(f"s_add_u32 s{sBASE}, s{sBASE}, s{sHKV}"); A(f"s_lshl_b32 s{sBASE}, s{sBASE}, 5")
    A(f"s_and_b32 s{t4}, s{sR}, 7"); A(f"s_add_u32 s{sBASE}, s{sBASE}, s{t4}"); A(f"s_add_u32 s{sBASE}, s{sBASE}, 24"); A(f"s_lshl_b32 s{sBASE}, s{sBASE}, 17")
    A(f"s_add_u32 s{sBLK}, s{sR}, s{sAW}")
    A(f"s_lshl_b32 s{sBLK}, s{sBLK}, 12")
    A(f"s_lshl_b32 s{sLB}, s{sAW}, 15")
    A(f"v_lshlrev_b32 v4, 2, v{vSLAB}"); A(f"v_xor_b32 v4, v4, v{vN}"); A(f"v_lshlrev_b32 v5, 4, v{vSLAB}")
    A("v_or_b32 v4, v4, v5"); A("v_lshlrev_b32 v16, 4, v4")
    for a in range(1, 4): A(f"v_xor_b32 v{16+a}, {16*a}, v16")
    A(f"s_mov_b32 s{t5}, s{sBLK}"); A(f"s_mov_b32 m0, s{sLB}")
    A(f"s_brev_b32 s{rA+2}, 16"); A(f"s_mov_b32 s{rA+3}, 0x20000")
    def kgrp(w_):
        A(f"s_and_b32 s{t4}, s{t5}, 0x1ffff"); A(f"s_add_u32 s{t4}, s{t4}, s{sBASE}")
        for a in range(4):
            if w_: A(f"s_waitcnt vmcnt({w_-1})")
            A(f"buffer_load_dwordx4 v{16+a}, {S4(rA)}, s{t4} offen offset:{1024*a}{KVF} lds")
        A(f"s_add_u32 s{t5}, s{t5}, 16384"); A("s_add_u32 m0, m0, 4096")
    A("s_waitcnt lgkmcnt(0)")
    A(f"s_mov_b32 s{rA}, s{sK}"); A(f"s_and_b32 s{rA+1}, s{sK+1}, 0xffff")
    if o.get('kfirst', 0): kgrp(0)
    if o.get('tlb', 1) == 3:
        stamp(6)
        A("s_barrier")
        kgrp(0)
    A("s_branch L_att")
    lab("L_front")
    if o.get('sprio'): A(f"s_setprio {o['sprio']}")
    A(f"s_and_b32 s{sJB}, s{sR}, 24"); A(f"s_add_u32 s{sJB}, s{sJB}, s{sHKV}"); A(f"s_sub_u32 s{sJB}, s{sJB}, 4")
    C("---- service waves: one 256x64 projection tile per WG (wq, w_gate or w_up); wave w takes rows 64w..64w+63")
    sSTR, sTOFF, sPPI, sKH = t0, t1, t3, t4
    XS, XA, T, F, D = 8, 24, 40, 72, 104
    PB, vPA = 232, 240
    vFL, vT0, vT1, vT2 = 4, 5, 6, 7
    vA0, vA2 = 241, 242
    A(f"v_lshlrev_b32 v{vT0}, 2, v0"); A(f"v_add_u32 v{vT0}, {L_Z}, v{vT0}"); A(f"v_mov_b32 v{vT1}, 0")
    A(f"ds_write_b32 v{vT0}, v{vT1}"); A(f"ds_write_b32 v{vT0}, v{vT1} offset:128")
    def code_pf():
        C("pull one line of the code into L2")
        A(f"s_getpc_b64 s[{t6}:{t7}]")
        lab("L_pc")
        A(f"s_sub_u32 s{t6}, s{t6}, L_pc-{NAME}_kernel"); A(f"s_subb_u32 s{t7}, s{t7}, 0")
        A(f"s_lshl2_add_u32 s{t2}, s{sR}, s{sWID}"); A(f"s_lshl_b32 s{t2}, s{t2}, 7")
        if o.get('cpf', 'late') == 'scalar':
            A(f"s_min_u32 s{t2}, s{t2}, L_codeend-{NAME}_kernel-4")
            A(f"s_load_dword s98, s[{t6}:{t7}], s{t2}")
        else:
            A(f"v_and_b32 v{vT2}, 1, v0"); A(f"v_lshl_add_u32 v{vT2}, v{vT2}, 6, s{t2}")
            A(f"v_min_u32 v{vT2}, L_codeend-{NAME}_kernel-4, v{vT2}")
            A(f"global_load_dword v243, v{vT2}, s[{t6}:{t7}]")
    if o.get('cpf', 'late') == 'early': code_pf()
    A(f"s_and_b32 s{sKH}, s{sR}, 1")
    A(f"v_lshlrev_b32 v{vA0}, 4, v0")
    A(f"v_lshrrev_b32 v{vA2}, 3, v{vN}"); A(f"v_lshl_add_u32 v{vA2}, v{vA2}, 2, v{vSLAB}")
    A(f"v_and_b32 v{vT2}, 7, v{vN}")
    A(f"s_lshr_b32 s{t5}, s{sR}, 3"); A(f"s_lshl_b32 s{t5}, s{t5}, 1"); A(f"s_bfe_u32 s{t6}, s{sR}, 0x10001"); A(f"s_add_u32 s{t5}, s{t5}, s{t6}")
    A(f"s_lshl3_add_u32 s{t5}, s{sHKV}, s{t5}")
    A(f"s_lshl_b32 s{sPOFF}, s{sKH}, 17"); A(f"s_add_u32 s{sPOFF}, s{sPOFF}, {WS_QP}")
    A(f"s_and_b32 s{t6}, s{sR}, 3"); A(f"s_mul_i32 s{t6}, s{t6}, {4*14336}"); A(f"s_add_u32 s{t6}, s{t6}, {WS_GU}")
    A(f"s_max_i32 s{t7}, s{sJB}, 0")
    A(f"s_cmp_lt_i32 s{sJB}, 0"); A(f"s_cselect_b32 s{t2}, 0, {512*3584}")
    A(f"s_bitcmp1_b32 s{sR}, 2")
    A(f"s_cselect_b32 s{t5}, s{t7}, s{t5}"); A(f"s_cselect_b32 s{sPOFF}, s{t6}, s{sPOFF}")
    A(f"s_cselect_b32 s{rA+2}, s{t2}, 0x400000")
    A(f"s_movk_i32 s{t6}, 3584"); A(f"s_cselect_b32 s{sSTR}, s{t6}, 0x2000")
    A(f"s_lshl_b32 s{sPPI}, s{sSTR}, 2")
    A(f"s_lshl_b32 s{t6}, s{t5}, 9"); A(f"s_add_u32 s{sPOFF}, s{sPOFF}, s{t6}")
    A(f"s_lshl2_add_u32 s{t6}, s{sKH}, s{sWID}"); A(f"s_lshl_b32 s{t6}, s{t6}, 6"); A(f"s_mul_i32 s{sTOFF}, s{t6}, s{sSTR}")
    A(f"s_lshl_b32 s{t6}, s{t5}, 7"); A(f"s_add_u32 s{sTOFF}, s{sTOFF}, s{t6}")
    A(f"s_lshl_b32 s{t6}, s{sSTR}, 3")
    A(f"v_mul_lo_u32 v{vA2}, v{vA2}, s{t6}"); A(f"v_lshl_add_u32 v{vA2}, v{vT2}, 4, v{vA2}")
    A(f"s_cmp_lg_u32 s{rA+2}, 0"); A(f"s_cselect_b32 s{sPUB}, 1, 0")
    A(f"s_mov_b32 s{rA+3}, 0x20000"); A(f"s_movk_i32 s{rB+2}, 4096"); A(f"s_mov_b32 s{rB+3}, 0x20000")
    A(f"s_lshl_b32 s{t5}, s{sWID}, 10")
    A("s_waitcnt lgkmcnt(0)")
    A(f"s_mov_b32 s{rB}, s{sX}"); A(f"s_and_b32 s{rB+1}, s{sX+1}, 0xffff")
    stamp(12)
    xl = o.get('xlast', 0)
    if not xl: A(f"buffer_load_dwordx4 {R(XS,4)}, v{vA0}, {S4(rB)}, s{t5} offen")
    A(f"s_bitcmp1_b32 s{sR}, 1")
    A(f"s_cselect_b32 s{rA}, s{sU}, s{sG}"); A(f"s_cselect_b32 s{rA+1}, s{sU+1}, s{sG+1}")
    A(f"s_bitcmp1_b32 s{sR}, 2")
    A(f"s_cselect_b32 s{rA}, s{rA}, s{sWQ}"); A(f"s_cselect_b32 s{rA+1}, s{rA+1}, s{sWQ+1}")
    A(f"s_and_b32 s{rA+1}, s{rA+1}, 0xffff")
    for j in range(8):
        A(f"buffer_load_dwordx4 {R(T+4*j,4)}, v{vA2}, {S4(rA)}, s{sTOFF} offen nt")
        if j < 7: A(f"s_add_u32 s{sTOFF}, s{sTOFF}, s{sSTR}")
        if xl and j == xl - 1: A(f"buffer_load_dwordx4 {R(XS,4)}, v{vA0}, {S4(rB)}, s{t5} offen")
    load_epoch()
    stamp(11)
    A("s_barrier")
    stamp(2)
    nl = 0
    if o.get('cpf', 'late') == 'late': code_pf(); nl = 1
    if o.get('cpf', 'late') == 'scalar': code_pf()
    A(f"s_waitcnt vmcnt({8 - xl + nl})")
    A(f"s_mov_b32 s{sLO}, 0x05040100"); A(f"s_mov_b32 s{sHI}, 0x07060302")
    C("layernorm of batch row w")
    srd(rWS, sWS, WS_END)
    A(f"v_and_b32 v{vFL}, 31, v0"); A(f"v_lshlrev_b32 v{vFL}, 2, v{vFL}"); A(f"v_add_u32 v{vFL}, {L_F}, v{vFL}")
    for i in range(4):
        A(f"v_lshlrev_b32 v{F+2*i}, 16, v{XS+i}"); A(f"v_and_b32 v{F+2*i+1}, 0xffff0000, v{XS+i}")
    AC, MU, TM, VR, RC, G = 12, 16, 18, 19, 20, F + 8
    def wave_sum(v):
        for ctl in ("quad_perm:[1,0,3,2]", "quad_perm:[2,3,0,1]", "row_ror:4", "row_ror:8"): dpp_op("v_add_f32", v, ctl)
        xsum_slabs(v, TM)
    A(f"v_pk_add_f32 {R(AC,2)}, {R(F,2)}, {R(F+2,2)}"); A(f"v_pk_add_f32 {R(AC+2,2)}, {R(F+4,2)}, {R(F+6,2)}")
    A(f"v_pk_add_f32 {R(AC,2)}, {R(AC,2)}, {R(AC+2,2)}")
    A(f"v_add_f32 v{MU}, v{AC}, v{AC+1}")
    wave_sum(MU)
    A(f"v_mul_f32 v{MU}, {hex(f2u(1/512))}, v{MU}"); A(f"v_mov_b32 v{MU+1}, v{MU}")
    for i in range(4): A(f"v_pk_add_f32 {R(G+2*i,2)}, {R(F+2*i,2)}, {R(MU,2)} neg_lo:[0,1] neg_hi:[0,1]")
    A(f"v_pk_mul_f32 {R(AC,2)}, {R(G,2)}, {R(G,2)}"); A(f"v_pk_mul_f32 {R(AC+2,2)}, {R(G+2,2)}, {R(G+2,2)}")
    A(f"v_pk_fma_f32 {R(AC,2)}, {R(G+4,2)}, {R(G+4,2)}, {R(AC,2)}"); A(f"v_pk_fma_f32 {R(AC+2,2)}, {R(G+6,2)}, {R(G+6,2)}, {R(AC+2,2)}")
    A(f"v_pk_add_f32 {R(AC,2)}, {R(AC,2)}, {R(AC+2,2)}")
    A(f"v_add_f32 v{VR}, v{AC}, v{AC+1}")
    wave_sum(VR)
    A(f"v_mul_f32 v{VR}, {hex(f2u(1/512))}, v{VR}")
    bf16r(MU); A(f"v_mov_b32 v{MU+1}, v{MU}")
    bf16r(VR)
    A(f"v_add_f32 v{VR}, {hex(f2u(1e-5))}, v{VR}"); bf16r(VR)
    A(f"v_sqrt_f32 v{VR}, v{VR}"); nop(1); bf16r(VR)
    A(f"v_rcp_f32 v{RC}, v{VR}"); nop(1)
    A(f"v_fma_f32 v{TM}, -v{VR}, v{RC}, 1.0"); A(f"v_fma_f32 v{RC}, v{TM}, v{RC}, v{RC}"); A(f"v_mov_b32 v{RC+1}, v{RC}")
    for i in range(4): A(f"v_pk_add_f32 {R(F+2*i,2)}, {R(F+2*i,2)}, {R(MU,2)} neg_lo:[0,1] neg_hi:[0,1]")
    for i in range(4): A(f"v_cvt_pk_bf16_f32 v{XS+i}, v{F+2*i}, v{F+2*i+1}")
    for i in range(4):
        A(f"v_lshlrev_b32 v{F+2*i}, 16, v{XS+i}"); A(f"v_and_b32 v{F+2*i+1}, 0xffff0000, v{XS+i}")
    for i in range(4): A(f"v_pk_mul_f32 {R(G+2*i,2)}, {R(F+2*i,2)}, {R(RC,2)}")
    for i in range(8): A(f"v_fma_f32 v{F+i}, -v{G+i}, v{VR}, v{F+i}")
    for i in range(4): A(f"v_pk_fma_f32 {R(G+2*i,2)}, {R(F+2*i,2)}, {R(RC,2)}, {R(G+2*i,2)}")
    for i in range(4): A(f"v_cvt_pk_bf16_f32 v{XS+i}, v{G+2*i}, v{G+2*i+1}")
    XP = 1024 + 32
    A(f"s_mul_i32 s{t5}, s{sWID}, {XP}"); A(f"s_add_u32 s{t5}, s{t5}, {L_O}"); A(f"v_add_u32 v{vT0}, s{t5}, v{vA0}")
    A(f"ds_write_b128 v{vT0}, {R(XS,4)}")
    A(f"s_lshl_b32 s{t5}, s{sWID}, 2"); A(f"s_add_u32 s{t5}, s{t5}, {L_F}")
    A(f"v_mov_b32 v{T-2}, s{t5}"); A(f"v_mov_b32 v{T-1}, 1")
    A(f"v_lshrrev_b32 v{vT1}, 2, v{vN}"); A(f"v_mul_u32_u24 v{vT1}, {XP}, v{vT1}")
    A(f"v_and_b32 v{vT2}, 1, v{vN}"); A(f"v_lshl_add_u32 v{vT2}, v{vT2}, 2, v{vSLAB}"); A(f"v_lshl_add_u32 v{vT1}, v{vT2}, 4, v{vT1}")
    A(f"s_lshl2_add_u32 s{t5}, s{sKH}, s{sWID}"); A(f"s_lshl_b32 s{t5}, s{t5}, 7"); A(f"s_add_u32 s{t5}, s{t5}, {L_O}"); A(f"v_add_u32 v{vT1}, s{t5}, v{vT1}")
    A("s_waitcnt lgkmcnt(0)")
    A(f"ds_write_b32 v{T-2}, v{T-1} offset:80")
    make_tag()
    lds_spin("x", vFL, vT0, "0xf00000")
    A(f"ds_read_b128 {R(XA,4)}, v{vT1}")
    A(f"s_waitcnt vmcnt({nl}) lgkmcnt(0)")
    C("projection MFMAs")
    def perms(e):
        for i in range(4):
            A(f"v_perm_b32 v{F+4*e+i}, v{T+4*(2*i+1)+(e>>1)}, v{T+4*(2*i)+(e>>1)}, s{sHI if e&1 else sLO}")
    def mfp(e):
        A(f"v_mfma_f32_16x16x32_bf16 {R(D+4*e,4)}, {R(XA,4)}, {R(F+4*e,4)}, 0")
    perms(0)
    for e in range(1, 8):
        perms(e); mfp(e-1)
    nop(2); mfp(7)
    A(f"v_mul_lo_u32 v{vPA}, v{vSLAB}, s{sPPI}"); A(f"v_lshl_add_u32 v{vPA}, v{vN}, 4, v{vPA}")
    A(f"s_lshl_b32 s{t5}, s{sWID}, 10"); A(f"s_add_u32 s{t5}, s{t5}, {L_X}"); A(f"v_add_u32 v{vT1}, s{t5}, v{vA0}")
    nop(2)
    for k in range(4):
        A(f"v_add_f32_dpp v{XS+k}, v{D+4*k+1}, v{D+4*k} row_ror:8 row_mask:0xf bank_mask:0x3")
    for k in range(4):
        A(f"v_add_f32_dpp v{XS+k}, v{D+16+4*k}, v{D+16+4*k+1} row_ror:8 row_mask:0xf bank_mask:0xc")
    A(f"s_cmp_eq_u32 s{sWID}, 0"); A("s_cbranch_scc1 L_pw0")
    A(f"ds_write_b128 v{vT1}, {R(XS,4)}")
    A("s_waitcnt lgkmcnt(0)")
    A(f"ds_write_b32 v{T-2}, v{T-1} offset:96")
    A("s_branch L_svc")
    lab("L_pw0")
    lds_spin("d", vFL, vT0, "0xe000000")
    for k in range(1, 4): A(f"ds_read_b128 {R(XS+4*k,4)}, v{vT1} offset:{1024*k}")
    for k in range(4): A(f"v_mov_b32 v{PB+2*k+1}, s{sTAG}")
    A("s_waitcnt lgkmcnt(0)")
    A(f"v_pk_add_f32 {R(XS,2)}, {R(XS,2)}, {R(XS+4,2)}"); A(f"v_pk_add_f32 {R(XS+2,2)}, {R(XS+2,2)}, {R(XS+6,2)}")
    A(f"v_pk_add_f32 {R(XS+8,2)}, {R(XS+8,2)}, {R(XS+12,2)}"); A(f"v_pk_add_f32 {R(XS+10,2)}, {R(XS+10,2)}, {R(XS+14,2)}")
    for k in range(4): A(f"v_add_f32 v{PB+2*k}, v{XS+k}, v{XS+8+k}")
    def proj_store(fl):
        A(f"buffer_store_dwordx4 {R(PB,4)}, v{vPA}, {S4(rWS)}, s{sPOFF} offen{fl}")
        A(f"buffer_store_dwordx4 {R(PB+4,4)}, v{vPA}, {S4(rWS)}, s{sPOFF} offen offset:256{fl}")
    A(f"s_cmp_eq_u32 s{sPUB}, 0"); A("s_cbranch_scc1 L_svc")
    if not o.get('nopub'): proj_store("")
    stamp(1)

    lab("L_svc")
    C("---- all service waves")
    A(f"s_lshr_b32 s{t0}, s{sR}, 3")
    A(f"s_lshl_b32 s{sH}, s{sHKV}, 2"); A(f"s_add_u32 s{sH}, s{sH}, s{t0}")
    A(f"s_and_b32 s{sCB}, s{sR}, 7")
    sRHO = 99
    if o.get('rmap', 1):
        if o.get('h2', 'half') == 'line':
            A(f"s_lshl_b32 s{sRHO}, s{sHKV}, 4"); A(f"s_add_u32 s{sRHO}, s{sRHO}, s{sR}"); A(f"s_cmp_lt_u32 s{sR}, 16"); A(f"s_cselect_b32 s{sRHO}, s{sRHO}, 128")
        else:
            A(f"s_lshl_b32 s{sRHO}, s{sHKV}, 5"); A(f"s_add_u32 s{sRHO}, s{sRHO}, s{sR}")
    else: A(f"s_mov_b32 s{sRHO}, s2")
    A(f"s_lshl_b32 s{sSTL}, s{sHKV}, 12"); A(f"s_add_u32 s{sSTL}, s{sSTL}, {WS_PR}")
    A(f"s_getreg_b32 s{sTAGX}, hwreg(HW_REG_XCC_ID, 0, 3)"); A(f"s_or_b32 s{sTAGX}, s{sTAGX}, s{sTAG}")
    PR, vPRA, vPRL = 244, 248, 249
    A(f"s_lshl_b32 s{t1}, s{sR}, 7"); A(f"v_lshl_add_u32 v{vPRA}, v0, 4, s{t1}")
    A(f"s_cmp_eq_u32 s{sWID}, 0"); A("s_cbranch_scc0 L_notw0")
    C("wave 0: presence record (tag | XCC id), then release the q gather once own stores are acknowledged")
    for k in range(4): A(f"v_mov_b32 v{PR+k}, s{sTAGX}")
    def pres_store(fl):
        A("s_mov_b64 exec, 15")
        A(f"buffer_store_dwordx4 {R(PR,4)}, v{vPRA}, {S4(rWS)}, s{sSTL} offen{fl}")
        A("s_mov_b64 exec, -1")
    if not o.get('nopres'): pres_store("")
    A(f"v_mov_b32 v{vT0}, {L_F + 8*4}"); A(f"v_mov_b32 v{vT1}, 1")
    A("s_waitcnt vmcnt(0)")
    A(f"ds_write_b32 v{vT0}, v{vT1}")
    A("s_branch L_go")
    lab("L_notw0")
    vXR = 250
    A(f"s_cmp_eq_u32 s{sWID}, 2"); A("s_cbranch_scc0 L_notw2")
    C("wave 2: residual x for the final sum; touch out's page")
    srd(rB, sX, 4096)
    if o.get('h2', 'half') == 'line':
        A(f"v_and_b32 v{vT0}, 7, v0"); A(f"v_lshlrev_b32 v{vXR+1}, 2, v{vT0}"); A(f"s_lshl_b32 s{t1}, s{sRHO}, 5")
    else:
        A(f"v_and_b32 v{vT0}, 3, v0"); A(f"v_lshlrev_b32 v{vXR+1}, 2, v{vT0}"); A(f"s_lshl_b32 s{t1}, s{sRHO}, 4")
    A(f"buffer_load_dword v{vXR}, v{vXR+1}, {S4(rB)}, s{t1} offen")
    if not o.get('tlb', 1):
        srd(rB, sOUT, 4096)
        A(f"buffer_load_dword v{vXR+2}, v{vXR+1}, {S4(rB)}, s{t1} offen nt")
    lab("L_notw2")
    lds_spin("go", vFL, vT0, "0x100")
    lab("L_go")
    C("q gather: wave w <-> head w")
    QG = 8
    A(f"v_lshlrev_b32 v{vT1}, 4, v0")
    A(f"v_and_b32 v{vPRL}, 31, v0"); A(f"v_lshlrev_b32 v{vPRL}, 7, v{vPRL}")
    A(f"s_lshl_b32 s{t1}, s{t0}, 15"); A(f"s_lshl_b32 s{t2}, s{sHKV}, 12"); A(f"s_add_u32 s{t1}, s{t1}, s{t2}")
    A(f"s_lshl_b32 s{t2}, s{sWID}, 10"); A(f"s_add_u32 s{t1}, s{t1}, s{t2}"); A(f"s_add_u32 s{t1}, s{t1}, {WS_QP}")
    A(f"s_add_u32 s{t2}, s{t1}, {1<<17}")
    A(f"s_mov_b32 s{sSPIN}, 0"); A(f"s_mov_b32 s{sMODE}, 0")
    A(f"v_mov_b32 v16, s{sTAGX}")
    if o.get('noq'): A("s_branch L_qok")
    lab("L_qpoll")
    for k in range(2): A(f"buffer_load_dwordx4 {R(QG+4*k,4)}, v{vT1}, {S4(rWS)}, s{t1+k} offen{HOF}")
    A(f"s_cmp_eq_u32 s{sWID}, {9 if o.get('nopres') else 0}"); A("s_cbranch_scc0 L_qnp")
    A(f"buffer_load_dword v16, v{vPRL}, {S4(rWS)}, s{sSTL} offen{HOF}")
    lab("L_qnp")
    A("s_waitcnt vmcnt(0)")
    for k in range(2): A(f"v_bitop3_b32 v{QG+4*k+1}, v{QG+4*k+1}, v{QG+4*k+3}, s{sTAG} bitop3:0x7e")
    A(f"v_xor_b32 v17, s{sTAGX}, v16")
    A(f"v_or3_b32 v18, v{QG+1}, v{QG+5}, v17")
    A("v_cmp_ne_u32 vcc, 0, v18")
    A("s_cbranch_vccz L_qok")
    C("slow path: a valid presence record from another XCD, or a long wait -> switch the group hand-offs to write-through")
    A(f"s_add_u32 s{sSPIN}, s{sSPIN}, 1")
    A(f"s_cmp_eq_u32 s{sWID}, 0"); A("s_cbranch_scc0 L_qretry")
    A("v_add_u32 v19, -1, v17"); A("v_cmp_gt_u32 vcc, 7, v19")
    A("s_cbranch_vccnz L_qrepub")
    A(f"s_cmp_lt_u32 s{sSPIN}, {REPUB_AT}"); A("s_cbranch_scc1 L_qretry")
    lab("L_qrepub")
    A(f"s_cmp_eq_u32 s{sMODE}, 0"); A("s_cbranch_scc0 L_qchk")
    A(f"s_mov_b32 s{sMODE}, 2")
    pres_store(" sc1")
    A(f"s_cmp_eq_u32 s{sPUB}, 0"); A("s_cbranch_scc1 L_qchk")
    proj_store(" sc1")
    lab("L_qchk")
    A("v_and_b32 v17, -8, v17"); A(f"v_or3_b32 v18, v{QG+1}, v{QG+5}, v17")
    A("v_cmp_ne_u32 vcc, 0, v18")
    A("s_cbranch_vccz L_qok")
    lab("L_qretry")
    A(f"s_sleep {o['sleep_q']}")
    A(f"s_cmp_lt_u32 s{sSPIN}, {SPIN_MAX}"); A("s_cbranch_scc1 L_qpoll")
    lab("L_qok")
    A(f"v_add_f32 v{QG}, v{QG}, v{QG+4}"); A(f"v_add_f32 v{QG+2}, v{QG+2}, v{QG+6}")
    A(f"v_cvt_pk_bf16_f32 v{QG}, v{QG}, v{QG+2}")
    A(f"s_mul_i32 s{t1}, s{sWID}, 320"); A(f"s_add_u32 s{t1}, s{t1}, {L_Q}")
    A(f"v_and_b32 v{vT1}, 32, v0"); A(f"v_and_b32 v{vT2}, 7, v0"); A(f"v_lshl_add_u32 v{vT1}, v{vT2}, 2, v{vT1}")
    A(f"v_bfe_u32 v{vT2}, v0, 3, 1"); A(f"v_lshl_add_u32 v{vT1}, v{vT2}, 1, v{vT1}")
    A(f"v_and_b32 v{vT2}, 1, v{vSLAB}"); A(f"v_add_u32 v{vT1}, v{vT1}, v{vT2}")
    A(f"v_lshl_add_u32 v{vT1}, v{vT1}, 2, s{t1}")
    A(f"ds_write_b32 v{vT1}, v{QG}")
    A(f"s_lshl_b32 s{t1}, s{sWID}, 2"); A(f"s_add_u32 s{t1}, s{t1}, {L_F+16}"); A(f"s_or_b32 s{t2}, s{sMODE}, 1")
    A(f"v_mov_b32 v{vT1}, s{t1}"); A(f"v_mov_b32 v{vT2}, s{t2}")
    A("s_waitcnt lgkmcnt(0)")
    A(f"ds_write_b32 v{vT1}, v{vT2}")
    stamp(3)
    C("issue g/u gather: lane (slab, b, mat, kh2): f = 64*jb + 16*w + 4*slab + (0..3)")
    GU = 200
    vGA = 216
    A(f"v_lshrrev_b32 v{vT0}, 2, v0"); A(f"s_movk_i32 s{t1}, 14336"); A(f"v_mul_lo_u32 v{vT0}, v{vT0}, s{t1}")
    A(f"v_and_b32 v{vT1}, 3, v0"); A(f"v_lshl_add_u32 v{vGA}, v{vT1}, 4, v{vT0}")
    sGO = 67
    A(f"s_max_i32 s{t1}, s{sJB}, 0"); A(f"s_lshl_b32 s{sGO}, s{t1}, 9"); A(f"s_lshl_b32 s{t1}, s{sWID}, 6"); A(f"s_add_u32 s{sGO}, s{sGO}, s{t1}")
    A(f"s_add_u32 s{sGO}, s{sGO}, {WS_GU}")
    def gu_loads():
        A(f"buffer_load_dwordx4 {R(GU,4)}, v{vGA}, {S4(rWS)}, s{sGO} offen{HOF}")
        A(f"buffer_load_dwordx4 {R(GU+4,4)}, v{vGA}, {S4(rWS)}, s{sGO} offen offset:256{HOF}")
    if o.get('nogu'): A("s_branch L_nogu")
    A(f"s_cmp_lt_i32 s{sJB}, 0"); A("s_cbranch_scc1 L_nogu")
    gu_loads()
    lab("L_nogu")
    C("tail addresses")
    vWA, vDA, vSA, vOA, vXW, vXR2, vHA = 220, 221, 222, 223, 224, 225, 226
    sWOo, sDNo, sSTo, sOPo, sOPo2, sH2o = 50, 52, 53, 54, 55, 56
    TW, TD = 168, 184
    A(f"v_lshlrev_b32 v{vT0}, 3, v{vN}")
    A(f"v_lshl_add_u32 v{vWA}, v{vSLAB}, 15, v{vT0}"); A(f"v_lshl_add_u32 v{vDA}, v{vSLAB}, 13, v{vT0}")
    A(f"s_lshl_b32 s{sWOo}, s{sH}, 17"); A(f"s_lshl_b32 s{t7}, s{sWID}, 11"); A(f"s_add_u32 s{sWOo}, s{sWOo}, s{t7}")
    A(f"s_lshl_b32 s{t7}, s{sCB}, 7"); A(f"s_add_u32 s{sWOo}, s{sWOo}, s{t7}")
    A(f"s_max_i32 s{sDNo}, s{sJB}, 0"); A(f"s_lshl_b32 s{sDNo}, s{sDNo}, 16"); A(f"s_add_u32 s{sDNo}, s{sDNo}, s{t7}")
    A(f"s_and_b32 s{t7}, s{sWID}, 1"); A(f"s_lshl_b32 s{t7}, s{t7}, 15"); A(f"s_add_u32 s{sDNo}, s{sDNo}, s{t7}")
    A(f"s_lshr_b32 s{t7}, s{sWID}, 1"); A(f"s_lshl_b32 s{t7}, s{t7}, 12"); A(f"s_add_u32 s{sDNo}, s{sDNo}, s{t7}")
    srd(rA, sWO, 0x400000)
    A(f"s_mov_b32 s{rB}, s{sDN}"); A(f"s_and_b32 s{rB+1}, s{sDN+1}, 0xffff"); A(f"s_mov_b32 s{rB+3}, 0x20000")
    A(f"s_cmp_lt_i32 s{sJB}, 0"); A(f"s_cselect_b32 s{rB+2}, 0, {1792*1024}")
    def tiles(where):
        n = 0
        if o['dn_at'] == where:
            for j in range(4): A(f"buffer_load_dwordx2 {R(TD+2*j,2)}, v{vDA}, {S4(rB)}, s{sDNo} offen offset:{1024*j} nt")
            n += 4
        if o['wo_at'] == where:
            for j in range(8):
                A(f"buffer_load_dwordx2 {R(TW+2*j,2)}, v{vWA}, {S4(rA)}, s{sWOo} offen offset:{1024*(j&1)} nt")
                if j & 1 and j < 7: A(f"s_add_u32 s{sWOo}, s{sWOo}, 8192")
            n += 8
        return n
    tiles("mid")
    A(f"v_and_b32 v{vT0}, 7, v{vN}"); A(f"v_lshlrev_b32 v{vT0}, 4, v{vT0}"); A(f"v_lshl_add_u32 v{vSA}, v{vSLAB}, 7, v{vT0}")
    A(f"s_lshl_b32 s{sSTo}, s{sH}, 9"); A(f"s_add_u32 s{sSTo}, s{sSTo}, {WS_ST}")
    A(f"v_lshlrev_b32 v{vOA}, 4, v0")
    A(f"s_lshl_b32 s{sOPo}, s{sH}, 14"); A(f"s_lshl_b32 s{t7}, s{sWID}, 12"); A(f"s_add_u32 s{sOPo}, s{sOPo}, s{t7}"); A(f"s_add_u32 s{sOPo}, s{sOPo}, {WS_OP}")
    A(f"s_lshl_b32 s{t7}, s{sWID}, 10"); A(f"s_add_u32 s{t7}, s{t7}, {L_X}"); A(f"v_lshl_add_u32 v{vXW}, v0, 4, s{t7}")
    A(f"s_lshl_b32 s{t7}, s{sWID}, 9"); A(f"s_add_u32 s{t7}, s{t7}, {L_X}"); A(f"v_lshl_add_u32 v{vXR2}, v0, 3, s{t7}")
    H2L = o.get('h2', 'half') == 'line'
    A(f"v_lshrrev_b32 v{vT0}, 5, v0"); A(f"v_lshlrev_b32 v{vT0}, 17, v{vT0}")
    if H2L:
        A(f"v_bfe_u32 v{vT1}, v0, 3, 2"); A(f"v_lshl_add_u32 v{vT0}, v{vT1}, 12, v{vT0}")
        A(f"v_and_b32 v{vT1}, 7, v0"); A(f"v_lshl_add_u32 v{vHA}, v{vT1}, 4, v{vT0}")
    else:
        A(f"v_bfe_u32 v{vT1}, v0, 2, 3"); A(f"v_lshl_add_u32 v{vT0}, v{vT1}, 11, v{vT0}")
        A(f"v_and_b32 v{vT1}, 3, v0"); A(f"v_lshl_add_u32 v{vHA}, v{vT1}, 4, v{vT0}")
    A(f"s_lshl_b32 s{sH2o}, s{sWID}, 18"); A(f"s_lshl_b32 s{t7}, s{sCB}, 14"); A(f"s_add_u32 s{sH2o}, s{sH2o}, s{t7}")
    A(f"s_lshl_b32 s{t7}, s{sH}, {7 if H2L else 6}"); A(f"s_add_u32 s{sH2o}, s{sH2o}, s{t7}"); A(f"s_add_u32 s{sH2o}, s{sH2o}, {WS_H2}")
    C("wait K_w landed and all q heads")
    A(f"s_lshl_b32 s{t1}, 1, s{sWID}"); A(f"s_or_b32 s{t1}, s{t1}, 0xf0")
    lds_spin("kq", vFL, vT0, f"s{t1}")
    A(f"v_readlane_b32 s{sMODE}, v{vT0}, 4"); A(f"s_and_b32 s{sMODE}, s{sMODE}, 2")
    stamp(4)
    QM = 8
    KF = 72
    vQA = 140
    A(f"v_and_b32 v{vT0}, 3, v{vN}"); A(f"v_mul_u32_u24 v{vT0}, 320, v{vT0}"); A(f"v_lshl_add_u32 v{vT0}, v{vSLAB}, 4, v{vT0}")
    A(f"v_add_u32 v{vT1}, {L_Q}, v{vT0}")
    A(f"v_lshrrev_b32 v{vT2}, 2, v{vN}")
    A(f"v_mov_b32 v{vQA+4}, {L_Z}")
    for u in range(4):
        A(f"v_cmp_eq_u32 vcc, {u}, v{vT2}"); nop(2)
        A(f"v_cndmask_b32 v{vQA+u}, v{vQA+4}, v{vT1}, vcc")
    for u in range(4):
        for c in range(4): A(f"ds_read_b128 {R(QM+16*u+4*c,4)}, v{vQA+u} offset:{64*c}")
        if u == 1: A("s_waitcnt lgkmcnt(4)")
    vKA = 146
    A(f"v_and_b32 v{vT1}, 3, v{vN}"); A(f"v_lshl_add_u32 v{vT1}, v{vT1}, 2, v{vT2}"); A(f"v_lshlrev_b32 v{vT1}, 8, v{vT1}")
    A(f"s_lshl_b32 s{t1}, s{sWID}, 15"); A(f"v_add_u32 v{vT1}, s{t1}, v{vT1}")
    A(f"v_xor_b32 v{vT2}, v{vSLAB}, v{vN}")
    for c in range(4):
        A(f"v_xor_b32 v{vKA+c}, {4*c}, v{vT2}"); A(f"v_lshl_add_u32 v{vKA+c}, v{vKA+c}, 4, v{vT1}")
    SD = 152
    def kread(i):
        gi, c = i >> 2, i & 3
        A(f"ds_read_b128 {R(KF+4*(i&15),4)}, v{vKA+c} offset:{gi*4096}")
    A("s_waitcnt lgkmcnt(0)")
    for i in range(12): kread(i)
    for i in range(32):
        gi, c = i >> 2, i & 3
        u, jh = gi >> 1, gi & 1
        outstanding = min(32, i + 12) - i - 1
        A(f"s_waitcnt lgkmcnt({outstanding})")
        first = (u == 0 and c == 0)
        A(f"v_mfma_f32_16x16x32_bf16 {R(SD+4*jh,4)}, {R(KF+4*(i&15),4)}, {R(QM+16*u+4*c,4)}, {'0' if first else R(SD+4*jh,4)}")
        if i + 12 < 32: kread(i + 12)
    nop(8)
    C("scores: round to bf16, scale, round; softmax numerator")
    SP = 160
    A(f"s_mov_b32 s{t1}, {hex(f2u(128**-0.5))}"); A(f"s_mov_b32 s{t7}, {LOG2E}")
    for i in range(4): A(f"v_cvt_pk_bf16_f32 v{SP+i}, v{SD+2*i}, v{SD+2*i+1}")
    for i in range(4):
        A(f"v_lshlrev_b32 v{SD+2*i}, 16, v{SP+i}"); A(f"v_and_b32 v{SD+2*i+1}, 0xffff0000, v{SP+i}")
    for i in range(8): A(f"v_mul_f32 v{SD+i}, s{t1}, v{SD+i}")
    for i in range(4): A(f"v_cvt_pk_bf16_f32 v{SP+i}, v{SD+2*i}, v{SD+2*i+1}")
    for i in range(4):
        A(f"v_lshlrev_b32 v{SD+2*i}, 16, v{SP+i}"); A(f"v_and_b32 v{SD+2*i+1}, 0xffff0000, v{SP+i}")
    MX, SM = 164, 165
    A(f"v_max3_f32 v{MX}, v{SD}, v{SD+1}, v{SD+2}"); A(f"v_max3_f32 v{SM}, v{SD+3}, v{SD+4}, v{SD+5}")
    A(f"v_max3_f32 v{MX}, v{MX}, v{SD+6}, v{SD+7}"); A(f"v_max_f32 v{MX}, v{MX}, v{SM}")
    dpp_op("v_max_f32", MX, "row_ror:4"); dpp_op("v_max_f32", MX, "row_ror:8")
    xsum_slabs(MX, vT0, "v_max_f32")
    for i in range(8): A(f"v_sub_f32 v{SD+i}, v{SD+i}, v{MX}")
    for i in range(8): A(f"v_mul_f32 v{SD+i}, s{t7}, v{SD+i}")
    for i in range(8): A(f"v_exp_f32 v{SD+i}, v{SD+i}")
    nop(1)
    for i in range(4): A(f"v_cvt_pk_bf16_f32 v{SP+i}, v{SD+2*i}, v{SD+2*i+1}")
    A(f"v_add_f32 v{SM}, v{SD}, v{SD+1}"); A(f"v_add_f32 v{vT0}, v{SD+2}, v{SD+3}")
    A(f"v_add_f32 v{vT1}, v{SD+4}, v{SD+5}"); A(f"v_add_f32 v{vT2}, v{SD+6}, v{SD+7}")
    A(f"v_add_f32 v{SM}, v{SM}, v{vT0}"); A(f"v_add_f32 v{vT1}, v{vT1}, v{vT2}"); A(f"v_add_f32 v{SM}, v{SM}, v{vT1}")
    A(f"v_and_b32 v{vT0}, 3, v{vN}"); A(f"v_mul_u32_u24 v{vT1}, 320, v{vT0}"); A(f"v_lshl_add_u32 v{vT1}, v{vSLAB}, 4, v{vT1}")
    A(f"v_and_b32 v{vT2}, 12, v{vN}"); A(f"v_lshl_add_u32 v{vT1}, v{vT2}, 4, v{vT1}")
    A(f"s_mul_i32 s{t1}, s{sWID}, 1280"); A(f"s_add_u32 s{t1}, s{t1}, {L_P}"); A(f"v_add_u32 v{vT1}, s{t1}, v{vT1}")
    A(f"ds_write_b128 v{vT1}, {R(SP,4)}")
    dpp_op("v_add_f32", SM, "row_ror:4"); dpp_op("v_add_f32", SM, "row_ror:8")
    xsum_slabs(SM, vT2)
    A(f"s_lshl_b32 s{t1}, s{sWID}, 2"); A(f"s_add_u32 s{t1}, s{t1}, {L_ST}"); A(f"v_lshl_add_u32 v{vT1}, v{vT0}, 4, s{t1}")
    A(f"s_lshl_b32 s{t1}, s{sWID}, 4"); A(f"s_add_u32 s{t1}, s{t1}, {L_MW}"); A(f"v_lshl_add_u32 v{vT2}, v{vT0}, 2, s{t1}")
    A(f"ds_write_b32 v{vT1}, v{MX}"); A(f"ds_write_b32 v{vT1}, v{SM} offset:64"); A(f"ds_write_b32 v{vT2}, v{MX}")
    A(f"s_lshl_b32 s{t1}, s{sWID}, 2"); A(f"s_add_u32 s{t1}, s{t1}, {L_F+36}")
    A(f"v_mov_b32 v{SD}, s{t1}"); A(f"v_mov_b32 v{SD+1}, 1")
    A("s_waitcnt lgkmcnt(0)")
    A(f"ds_write_b32 v{SD}, v{SD+1}")
    stamp(5)
    A(f"s_cmp_eq_u32 s{sWID}, 3"); A("s_cbranch_scc0 L_nostat")
    C("wave 3: WG-level softmax stats publish")
    lds_spin("st", vFL, vT0, "0x1e00")
    A(f"v_and_b32 v{vT0}, 3, v0"); A(f"v_lshlrev_b32 v{vT0}, 4, v{vT0}"); A(f"v_add_u32 v{vT1}, {L_ST}, v{vT0}")
    A(f"ds_read_b128 {R(8,4)}, v{vT1}"); A(f"ds_read_b128 {R(12,4)}, v{vT1} offset:64")
    A(f"s_mov_b32 s{t7}, {LOG2E}")
    A("s_waitcnt lgkmcnt(0)")
    A("v_max3_f32 v16, v8, v9, v10"); A("v_max_f32 v16, v16, v11")
    for i in range(4): A(f"v_sub_f32 v{8+i}, v{8+i}, v16")
    for i in range(4): A(f"v_mul_f32 v{8+i}, s{t7}, v{8+i}")
    for i in range(4): A(f"v_exp_f32 v{8+i}, v{8+i}")
    A(f"v_mov_b32 v17, s{sTAG}"); A(f"v_mov_b32 v19, s{sTAG}")
    A("v_mul_f32 v18, v8, v12")
    for i in range(1, 4): A(f"v_fmac_f32 v18, v{8+i}, v{12+i}")
    A(f"v_lshlrev_b32 v{vT0}, 5, v{vT0}")
    A(f"s_lshl_b32 s{t7}, s{sHKV}, 11"); A(f"s_lshl_b32 s{t1}, s{sR}, 4"); A(f"s_add_u32 s{t7}, s{t7}, s{t1}"); A(f"s_add_u32 s{t7}, s{t7}, {WS_ST}")
    A("s_mov_b64 exec, 15")
    store_mode("st", f"buffer_store_dwordx4 v[16:19], v{vT0}, {S4(rWS)}, s{t7} offen")
    A("s_mov_b64 exec, -1")
    lab("L_nostat")
    C("g/u check + FFN hidden activations")
    AH = 218
    A(f"v_mov_b32 v{AH}, 0"); A(f"v_mov_b32 v{AH+1}, 0")
    if o.get('nogu'): A("s_branch L_noffn")
    A(f"s_cmp_lt_i32 s{sJB}, 0"); A("s_cbranch_scc1 L_noffn")
    A(f"s_mov_b32 s{sSPIN}, 0")
    nmid = (4 if o['dn_at'] == "mid" else 0) + (8 if o['wo_at'] == "mid" else 0)
    A(f"s_cmp_eq_u32 s{sWID}, 3"); A("s_cbranch_scc1 L_guw3")
    A(f"s_waitcnt vmcnt({nmid})"); A("s_branch L_gupoll")
    lab("L_guw3")
    A(f"s_waitcnt vmcnt({nmid+1})")
    lab("L_gupoll")
    for k in range(2): A(f"v_bitop3_b32 v{GU+4*k+1}, v{GU+4*k+1}, v{GU+4*k+3}, s{sTAG} bitop3:0x7e")
    A(f"v_or_b32 v{GU+1}, v{GU+1}, v{GU+5}")
    A(f"v_cmp_ne_u32 vcc, 0, v{GU+1}")
    A("s_cbranch_vccz L_guok")
    A(f"s_add_u32 s{sSPIN}, s{sSPIN}, 1"); A(f"s_cmp_lt_u32 s{sSPIN}, {SPIN_MAX}"); A("s_cbranch_scc0 L_guok")
    gu_loads()
    A("s_waitcnt vmcnt(0)")
    A("s_branch L_gupoll")
    lab("L_guok")
    vals = [GU + 2*i for i in range(4)]
    GG, UU = 208, 212
    for v in vals: A(f"v_mov_b32 v{v+1}, v{v}")
    for v in vals: A(f"v_permlane16_swap_b32 v{v}, v{v+1}")
    for i, v in enumerate(vals): A(f"v_add_f32 v{GG+i}, v{v}, v{v+1}")
    for i in range(4): A(f"v_cvt_pk_bf16_f32 v{GG+i}, v{GG+i}, v{GG+i}")
    for i in range(4): A(f"v_and_b32 v{GG+i}, 0xffff0000, v{GG+i}")
    for i in range(4): A(f"v_mov_b32 v{UU+i}, v{GG+i}")
    for i in range(4): A(f"v_permlane32_swap_b32 v{GG+i}, v{UU+i}")
    A(f"s_mov_b32 s{t7}, {hex(f2u(-1.4426950408889634))}")
    for i in range(4): A(f"v_mul_f32 v{vals[i]}, s{t7}, v{GG+i}")
    for i in range(4): A(f"v_exp_f32 v{vals[i]}, v{vals[i]}")
    nop(1)
    for i in range(4): A(f"v_add_f32 v{vals[i]}, 1.0, v{vals[i]}")
    for i in range(4): A(f"v_rcp_f32 v{vals[i]}, v{vals[i]}")
    nop(1)
    for i in range(4): A(f"v_mul_f32 v{GG+i}, v{GG+i}, v{vals[i]}")
    for i in range(4): A(f"v_cvt_pk_bf16_f32 v{GG+i}, v{GG+i}, v{GG+i}")
    for i in range(4): A(f"v_and_b32 v{GG+i}, 0xffff0000, v{GG+i}")
    for i in range(4): A(f"v_mul_f32 v{GG+i}, v{GG+i}, v{UU+i}")
    A(f"v_and_b32 v{vT0}, 3, v0"); A(f"v_cmp_eq_u32 vcc, v{vT0}, v{vSLAB}")
    A(f"v_cvt_pk_bf16_f32 v{GG}, v{GG}, v{GG+1}"); A(f"v_cvt_pk_bf16_f32 v{GG+1}, v{GG+2}, v{GG+3}")
    A(f"v_cndmask_b32 v{AH}, v{AH}, v{GG}, vcc"); A(f"v_cndmask_b32 v{AH+1}, v{AH+1}, v{GG+1}, vcc")
    lab("L_noffn")
    if o['pt']:
        C("wave 1: bring this WG's share of the O hand-off lines into L2")
        A(f"s_cmp_eq_u32 s{sWID}, 1"); A("s_cbranch_scc0 L_nopt")
        A(f"v_lshlrev_b32 v{vT0}, 5, v0"); A(f"s_lshl_b32 s{t7}, s{sCB}, 11"); A(f"s_add_u32 s{t7}, s{t7}, s{sOPo}"); A(f"s_sub_u32 s{t7}, s{t7}, 4096")
        A(f"buffer_load_dword v230, v{vT0}, {S4(rWS)}, s{t7} offen{HOF}")
        lab("L_nopt")
    if o.get('vbar'): A("s_barrier")
    elif o.get('vall'): lds_spin("v", vFL, vT0, "0xf0000")
    else:
        A(f"s_lshl_b32 s{t1}, 0x10000, s{sWID}")
        lds_spin("v", vFL, vT0, f"s{t1}")
    if o.get('wb') == 2:
        A(f"s_cmp_eq_u32 s{sWID}, 3"); A("s_cbranch_scc0 L_nowb2")
        A(f"s_cmp_eq_u32 s{sR}, 4"); A("s_cbranch_scc0 L_nowb2")
        A("buffer_wbl2 sc1")
        lab("L_nowb2")
    stamp(6)
    SG, OG = 48, 52
    BW, BD, DF, DD, ACC, vW = 72, 88, 96, 112, 144, 148
    def st_load(): A(f"buffer_load_dwordx4 {R(SG,4)}, v{vSA}, {S4(rWS)}, s{sSTo} offen{HOF}")
    def o_loads(p):
        A(f"buffer_load_dwordx4 {R(OG+8*p,4)}, v{vOA}, {S4(rWS)}, s{sOPo} offen offset:{2048*p}{HOF}")
        A(f"buffer_load_dwordx4 {R(OG+8*p+4,4)}, v{vOA}, {S4(rWS)}, s{sOPo} offen offset:{2048*p+1024}{HOF}")
    st_load()
    nb2 = tiles("b2")
    A("s_barrier")
    stamp(7)
    if o.get('b3delay'): A(f"s_sleep {o['b3delay']}")
    nb3 = tiles("b3")
    if o['oearly']: A(f"s_sleep {o['oearly']}")
    if o.get('notail', 0) < 3:
        o_loads(0); o_loads(1)
    else: A("s_waitcnt vmcnt(0)")
    A(f"s_mov_b32 s{sSPIN}, 0")
    A(f"s_waitcnt vmcnt({nb2+nb3+4})")
    if o.get('notail'): A("s_branch L_stok")
    lab("L_stpoll")
    A(f"v_bitop3_b32 v{SG+1}, v{SG+1}, v{SG+3}, s{sTAG} bitop3:0x7e")
    A(f"v_cmp_ne_u32 vcc, 0, v{SG+1}")
    A("s_cbranch_vccz L_stok")
    A(f"s_add_u32 s{sSPIN}, s{sSPIN}, 1"); A(f"s_cmp_lt_u32 s{sSPIN}, {SPIN_MAX}"); A("s_cbranch_scc0 L_stok")
    st_load()
    A("s_waitcnt vmcnt(0)")
    A("s_branch L_stpoll")
    lab("L_stok")
    stamp(14)
    A(f"s_mov_b32 s{t7}, {LOG2E}")
    A(f"v_mov_b32 v{SG+1}, v{SG}")
    dpp_op("v_max_f32", SG+1, "quad_perm:[1,0,3,2]"); dpp_op("v_max_f32", SG+1, "quad_perm:[2,3,0,1]"); dpp_op("v_max_f32", SG+1, "row_ror:4")
    A(f"v_sub_f32 v{SG}, v{SG}, v{SG+1}"); A(f"v_mul_f32 v{SG}, s{t7}, v{SG}"); A(f"v_exp_f32 v{SG}, v{SG}"); nop(1)
    A(f"v_mul_f32 v{SG+2}, v{SG}, v{SG+2}")
    dpp_op("v_add_f32", SG+2, "quad_perm:[1,0,3,2]"); dpp_op("v_add_f32", SG+2, "quad_perm:[2,3,0,1]"); dpp_op("v_add_f32", SG+2, "row_ror:4")
    A(f"v_rcp_f32 v{SG+2}, v{SG+2}"); nop(1)
    A(f"v_mul_f32 v{vW}, v{SG}, v{SG+2}")
    A("s_waitcnt vmcnt(4)")
    stamp(13)
    for e in range(4):
        for i in range(2):
            A(f"v_perm_b32 v{BD+2*e+i}, v{TD+2*(2*i+1)+(e>>1)}, v{TD+2*(2*i)+(e>>1)}, s{sHI if e&1 else sLO}")
    order = [0, 2, 1, 3]
    for e in range(4):
        for i in range(4):
            pr = order[i]
            A(f"v_perm_b32 v{BW+4*e+i}, v{TW+2*(2*pr+1)+(e>>1)}, v{TW+2*(2*pr)+(e>>1)}, s{sHI if e&1 else sLO}")
        A(f"v_mfma_f32_16x16x16_bf16 {R(DF+4*e,4)}, {R(AH,2)}, {R(BD+2*e,2)}, 0")
    nop(8)
    for e in range(4): A(f"v_add_f32 v{ACC+e}, v{DF+4*e}, v{DF+4*e+1}")
    for e in range(4): A(f"v_add_f32 v{DF+4*e+2}, v{DF+4*e+2}, v{DF+4*e+3}")
    for e in range(4): A(f"v_add_f32 v{ACC+e}, v{ACC+e}, v{DF+4*e+2}")
    C("O partial gather (retry only the lanes still missing)")
    A(f"s_mov_b32 s{sSPIN}, 0")
    lab("L_opoll")
    A("s_waitcnt vmcnt(0)")
    if o.get('notail'): A("s_branch L_ook")
    for p, mk in ((0, mA), (1, mB)):
        A(f"v_bitop3_b32 v{vT0}, v{OG+8*p+1}, v{OG+8*p+3}, s{sTAG} bitop3:0x7e")
        A(f"v_bitop3_b32 v{vT1}, v{OG+8*p+5}, v{OG+8*p+7}, s{sTAG} bitop3:0x7e")
        A(f"v_or_b32 v{vT0}, v{vT0}, v{vT1}")
        A(f"v_cmp_ne_u32 s[{mk}:{mk+1}], 0, v{vT0}")
    A(f"s_or_b64 s[{mC}:{mC+1}], s[{mA}:{mA+1}], s[{mB}:{mB+1}]")
    A("s_cbranch_scc0 L_ook")
    A(f"s_add_u32 s{sSPIN}, s{sSPIN}, 1"); A(f"s_cmp_lt_u32 s{sSPIN}, {SPIN_MAX}"); A("s_cbranch_scc0 L_ook")
    if o['sleep_o']: A(f"s_sleep {o['sleep_o']}")
    A(f"s_mov_b64 exec, s[{mA}:{mA+1}]"); A("s_cbranch_execz L_o1")
    o_loads(0)
    lab("L_o1")
    A(f"s_mov_b64 exec, s[{mB}:{mB+1}]"); A("s_cbranch_execz L_o2")
    o_loads(1)
    lab("L_o2")
    A("s_mov_b64 exec, -1")
    A("s_branch L_opoll")
    lab("L_ook")
    stamp(8)
    for p in range(2):
        A(f"v_mov_b32 v{OG+8*p+1}, v{OG+8*p+4}"); A(f"v_mov_b32 v{OG+8*p+3}, v{OG+8*p+6}")
    nop(1)
    for p in range(2):
        for e in range(4):
            A(f"v_mfma_f32_16x16x32_bf16 {R(DD+16*p+4*e,4)}, {R(OG+8*p,4)}, {R(BW+4*e,4)}, 0")
    nop(1)
    for p in range(2):
        for r in range(4):
            for e in range(4):
                A(f"v_fmac_f32_dpp v{ACC+e}, v{vW}, v{DD+16*p+4*e+r} row_newbcast:{4*p+r} {DPP}")
    A(f"ds_write_b128 v{vXW}, {R(ACC,4)}")
    A("s_waitcnt lgkmcnt(0)")
    A("s_barrier")
    A(f"s_cmp_ge_u32 s{sWID}, 2"); A("s_cbranch_scc1 L_final")
    for k in range(4): A(f"ds_read_b64 {R(8+2*k,2)}, v{vXR2} offset:{1024*k}")
    A(f"v_mov_b32 v17, s{sTAG}"); A(f"v_mov_b32 v19, s{sTAG}")
    A("s_waitcnt lgkmcnt(2)"); A("v_pk_add_f32 v[8:9], v[8:9], v[10:11]")
    A("s_waitcnt lgkmcnt(0)"); A("v_pk_add_f32 v[12:13], v[12:13], v[14:15]")
    A("v_add_f32 v16, v8, v12"); A("v_add_f32 v18, v9, v13")
    if o.get('notail', 0) < 2: A(f"buffer_store_dwordx4 v[16:19], v{vHA}, {S4(rWS)}, s{sH2o} offen{HSF}")
    if stamps:
        stamp(9)
        A(f"s_cmp_eq_u32 s{sWID}, 0"); A("s_cbranch_scc1 L_wstamp0")
    A("s_endpgm")
    lab("L_final")
    if o.get('wb') == 1:
        A(f"s_cmp_eq_u32 s{sWID}, 3"); A("s_cbranch_scc0 L_nowb")
        A(f"s_cmp_eq_u32 s{sR}, 0"); A("s_cbranch_scc0 L_end")
        A("buffer_wbl2 sc1")
        A("s_endpgm")
        lab("L_nowb")
    A(f"s_cmp_eq_u32 s{sWID}, 2"); A("s_cbranch_scc0 L_end")
    if H2L:
        C("final reduction over heads for 16 outputs (workgroups 0..127)")
        A(f"s_cmp_lt_u32 s{sRHO}, 128"); A("s_cbranch_scc0 L_noep")
        srd(rB, sOUT, 4096)
        sRo = t0
        A(f"s_lshl_b32 s{sRo}, s{sRHO}, 12"); A(f"s_add_u32 s{sRo}, s{sRo}, {WS_H2}")
        A(f"v_lshlrev_b32 v{vT1}, 4, v0")
        A(f"s_mov_b32 s{sSPIN}, 0")
        mk = [mA, mB, mC, 52]
        if o['delay_h2']: A(f"s_sleep {o['delay_h2']}")
        for j in range(4): A(f"buffer_load_dwordx4 {R(8+4*j,4)}, v{vT1}, {S4(rWS)}, s{sRo} offen offset:{1024*j}{HLF}")
        lab("L_hpoll")
        for j in range(4):
            A(f"s_waitcnt vmcnt({0 if o.get('hmask', 1) else 3-j})")
            A(f"v_bitop3_b32 v{24+j}, v{9+4*j}, v{11+4*j}, s{sTAG} bitop3:0x7e")
        A("v_or3_b32 v28, v24, v25, v26"); A("v_or_b32 v28, v28, v27")
        A("v_cmp_ne_u32 vcc, 0, v28")
        A("s_cbranch_vccz L_hok")
        A(f"s_add_u32 s{sSPIN}, s{sSPIN}, 1"); A(f"s_cmp_lt_u32 s{sSPIN}, {SPIN_MAX}"); A("s_cbranch_scc0 L_hok")
        if o['sleep_h2']: A(f"s_sleep {o['sleep_h2']}")
        if o.get('hmask', 1):
            for j in range(4): A(f"v_cmp_ne_u32 s[{mk[j]}:{mk[j]+1}], 0, v{24+j}")
            for j in range(4):
                A(f"s_mov_b64 exec, s[{mk[j]}:{mk[j]+1}]"); A(f"s_cbranch_execz L_h{j}")
                A(f"buffer_load_dwordx4 {R(8+4*j,4)}, v{vT1}, {S4(rWS)}, s{sRo} offen offset:{1024*j}{HLF}")
                lab(f"L_h{j}")
            A("s_mov_b64 exec, -1")
        else:
            for j in range(4): A(f"buffer_load_dwordx4 {R(8+4*j,4)}, v{vT1}, {S4(rWS)}, s{sRo} offen offset:{1024*j}{HLF}")
        A("s_branch L_hpoll")
        lab("L_hok")
        A("v_add_f32 v8, v8, v12"); A("v_add_f32 v10, v10, v14"); A("v_add_f32 v16, v16, v20"); A("v_add_f32 v18, v18, v22")
        A("v_add_f32 v8, v8, v16"); A("v_add_f32 v10, v10, v18")
        nop(1)
        A(f"v_add_f32_dpp v8, v8, v8 row_ror:8 {DPP}"); A(f"v_add_f32_dpp v10, v10, v10 row_ror:8 {DPP}")
        for sw in ("v_permlane16_swap_b32", "v_permlane32_swap_b32"):
            A("v_mov_b32 v9, v8"); A("v_mov_b32 v11, v10"); nop(2)
            A(f"{sw} v8, v9"); A(f"{sw} v10, v11"); nop(1)
            A("v_add_f32 v8, v8, v9"); A("v_add_f32 v10, v10, v11")
        A(f"v_lshlrev_b32 v12, 16, v{vXR}"); A(f"v_and_b32 v13, 0xffff0000, v{vXR}")
        A("v_add_f32 v8, v8, v12"); A("v_add_f32 v10, v10, v13")
        A("v_cvt_pk_bf16_f32 v8, v8, v10")
        A(f"s_lshl_b32 s{t1}, s{sRHO}, 5")
        A("v_and_b32 v14, 7, v0"); A("v_lshlrev_b32 v14, 2, v14")
        A("s_mov_b64 exec, 0xff")
        A(f"buffer_store_dword v8, v14, {S4(rB)}, s{t1} offen{o.get('outf', '')}")
    else:
        C("final reduction over heads for 8 outputs")
        srd(rB, sOUT, 4096)
        sRo = t0
        A(f"s_lshl_b32 s{sRo}, s{sRHO}, 11"); A(f"s_add_u32 s{sRo}, s{sRo}, {WS_H2}")
        A(f"v_lshlrev_b32 v{vT1}, 4, v0")
        A(f"s_mov_b32 s{sSPIN}, 0")
        if o['delay_h2']: A(f"s_sleep {o['delay_h2']}")
        if o.get('notail'): A("s_branch L_hok")
        lab("L_hpoll")
        A(f"buffer_load_dwordx4 v[8:11], v{vT1}, {S4(rWS)}, s{sRo} offen{HLF}")
        A(f"buffer_load_dwordx4 v[12:15], v{vT1}, {S4(rWS)}, s{sRo} offen offset:1024{HLF}")
        A("s_waitcnt vmcnt(0)")
        A(f"v_bitop3_b32 v9, v9, v11, s{sTAG} bitop3:0x7e"); A(f"v_bitop3_b32 v13, v13, v15, s{sTAG} bitop3:0x7e")
        A("v_or_b32 v9, v9, v13")
        A("v_cmp_ne_u32 vcc, 0, v9")
        A("s_cbranch_vccz L_hok")
        if o['sleep_h2']: A(f"s_sleep {o['sleep_h2']}")
        A(f"s_add_u32 s{sSPIN}, s{sSPIN}, 1"); A(f"s_cmp_lt_u32 s{sSPIN}, {SPIN_MAX}"); A("s_cbranch_scc1 L_hpoll")
        lab("L_hok")
        A("v_add_f32 v8, v8, v12"); A("v_add_f32 v10, v10, v14")
        nop(1)
        for ctl in ("row_ror:4", "row_ror:8"):
            A(f"v_add_f32_dpp v8, v8, v8 {ctl} {DPP}"); A(f"v_add_f32_dpp v10, v10, v10 {ctl} {DPP}"); nop(1)
        for sw in ("v_permlane16_swap_b32", "v_permlane32_swap_b32"):
            A("v_mov_b32 v9, v8"); A("v_mov_b32 v11, v10"); nop(2)
            A(f"{sw} v8, v9"); A(f"{sw} v10, v11"); nop(1)
            A("v_add_f32 v8, v8, v9"); A("v_add_f32 v10, v10, v11")
        A(f"v_lshlrev_b32 v12, 16, v{vXR}"); A(f"v_and_b32 v13, 0xffff0000, v{vXR}")
        A("v_add_f32 v8, v8, v12"); A("v_add_f32 v10, v10, v13")
        A("v_cvt_pk_bf16_f32 v8, v8, v10")
        A(f"s_lshl_b32 s{t1}, s{sRHO}, 4")
        A("v_and_b32 v14, 3, v0"); A("v_lshlrev_b32 v14, 2, v14")
        A("s_mov_b64 exec, 15")
        A(f"buffer_store_dword v8, v14, {S4(rB)}, s{t1} offen")
    A("s_cmp_eq_u32 s2, 0"); A("s_cbranch_scc0 L_noep")
    C("advance the hand-off epoch (every workgroup has read it by now)")
    A("s_mov_b64 exec, 1")
    A(f"s_add_u32 s{t1}, s{sEP}, 1")
    A(f"v_mov_b32 v9, s{t1}"); A("v_mov_b32 v10, 0")
    A(f"buffer_store_dword v9, v10, {S4(rWS)}, 0 offen offset:{WS_EPOCH}{o.get('epf', '')}")
    lab("L_noep")
    if stamps:
        stamp(10)
        stamps_to_lds([(10, 10)])
        A("s_sleep 8")
        A(f"s_add_u32 s{t2}, s{sWS}, 0x10000000"); A(f"s_addc_u32 s{t3}, s{sWS+1}, 0")
        A(f"v_lshlrev_b32 v6, 2, v0"); A(f"v_add_u32 v7, {L_S}, v6"); A("ds_read_b32 v8, v7")
        A(f"s_lshl_b32 s{t1}, s2, 8"); A(f"v_add_u32 v6, s{t1}, v6")
        A("s_waitcnt lgkmcnt(0)")
        A(f"global_store_dword v6, v8, s[{t2}:{t3}]")
    A("s_endpgm")
    if stamps:
        lab("L_wstamp0")
        stamps_to_lds([(i, i) for i in range(10)] + [(11, 18), (12, 19), (13, 20), (14, 21)])
        A("s_endpgm")

    L.append(".p2align 6")
    lab("L_att")
    C("---- attention waves 4..7 (continued)")
    VV, PA, PT, XX, YY = 128, 64, 24, 8, 12
    A(f"s_mov_b32 s{sLO}, 0x05040100"); A(f"s_mov_b32 s{sHI}, 0x07060302")
    sKW = sH
    wk = o['wk']
    A(f"s_and_b32 s{sJB}, s{sR}, 24"); A(f"s_add_u32 s{sJB}, s{sJB}, s{sHKV}"); A(f"s_sub_u32 s{sJB}, s{sJB}, 4")
    A(f"s_mov_b32 s{sKW}, {wk[2]}")
    A(f"s_and_b32 s{t4}, s{sJB}, 3"); A(f"s_and_b32 s{t6}, s{sR}, 4"); A(f"s_or_b32 s{t4}, s{t4}, s{t6}")
    A(f"s_cmp_eq_u32 s{t4}, 7"); A(f"s_cselect_b32 s{sKW}, {wk[3]}, s{sKW}")
    A(f"s_cmp_eq_u32 s{t6}, 0"); A(f"s_cselect_b32 s{t4}, {wk[1]}, {wk[0]}")
    A(f"s_cmp_lt_i32 s{sJB}, 0"); A(f"s_cselect_b32 s{sKW}, s{t4}, s{sKW}")
    A(f"s_lshr_b32 s{t4}, s{sR}, 1"); A(f"s_cmp_eq_u32 s{t4}, 5"); A(f"s_cselect_b32 s{sKW}, {wk[4]}, s{sKW}")
    A("v_lshlrev_b32 v20, 4, v0")
    A(f"s_lshl_b32 s{t4}, s{sAW}, 2"); A(f"s_add_u32 s{t4}, s{t4}, {L_F}"); A(f"v_mov_b32 v21, s{t4}"); A("v_mov_b32 v22, 1")
    if o.get('tlb', 1) == 2:
        stamp(6)
        A("s_barrier")
        kgrp(0)
    if o.get('tlb', 1):
        C("touch the pages used later while the memory system is still quiet")
        A(f"s_lshr_b32 s{t4}, s{sR}, 3"); A(f"s_lshl2_add_u32 s{t4}, s{sHKV}, s{t4}"); A(f"s_lshl_b32 s{t4}, s{t4}, 17")
        A(f"s_max_i32 s{t7}, s{sJB}, 0"); A(f"s_lshl_b32 s{t7}, s{t7}, 16")
        A(f"s_mov_b64 s[{mA}:{mA+1}], s[{sV}:{sV+1}]"); A(f"s_mov_b32 s{t6}, s{sBASE}")
        A(f"s_cmp_eq_u32 s{sAW}, 1"); A(f"s_cselect_b64 s[{mA}:{mA+1}], s[{sWO}:{sWO+1}], s[{mA}:{mA+1}]"); A(f"s_cselect_b32 s{t6}, s{t4}, s{t6}")
        A(f"s_cmp_eq_u32 s{sAW}, 2"); A(f"s_cselect_b64 s[{mA}:{mA+1}], s[{sDN}:{sDN+1}], s[{mA}:{mA+1}]"); A(f"s_cselect_b32 s{t6}, s{t7}, s{t6}")
        A(f"s_cmp_eq_u32 s{sAW}, 3"); A(f"s_cselect_b64 s[{mA}:{mA+1}], s[{sWS}:{sWS+1}], s[{mA}:{mA+1}]"); A(f"s_cselect_b32 s{t6}, {WS_END}, s{t6}")
        A(f"v_mov_b32 v6, s{t6}"); A("v_mov_b32 v7, 0")
        A(f"global_load_dword v8, v6, s[{mA}:{mA+1}] nt")
        if o.get('outtouch'):
            A("s_cbranch_scc0 L_tlb1")
            A(f"global_load_dword v9, v7, s[{sOUT}:{sOUT+1}] nt")
            lab("L_tlb1")
    srd(rB, sV, 0x8000000)
    load_epoch()
    A(f"s_add_u32 s{t6}, s{sLB}, 32768")
    if o.get('tlb', 1) not in (2, 3):
        stamp(6)
        A("s_barrier")
    wins = o['wk']
    uniq = sorted(set(wins))
    if len(uniq) > 1:
        for w_ in uniq[1:]:
            A(f"s_cmp_eq_u32 s{sKW}, {w_}"); A(f"s_cbranch_scc1 L_kloop{w_}")
    for w_ in uniq:
        lab(f"L_kloop{w_}")
        kgrp(w_)
        A(f"s_cmp_lt_u32 m0, s{t6}"); A(f"s_cbranch_scc1 L_kloop{w_}")
        if w_ != uniq[-1]: A("s_branch L_kdone")
    lab("L_kdone")
    stamp(1)
    FS = 56
    vFA, vOW, vOR, vOS = 60, 61, 62, 63
    def setup1():
        srd(rWS, sWS, WS_END)
        A(f"v_and_b32 v4, 3, v{vN}"); A("v_mul_u32_u24 v4, 320, v4"); A(f"v_lshl_add_u32 v4, v{vSLAB}, 4, v4")
        A(f"s_mul_i32 s{t6}, s{sAW}, 1280"); A(f"s_add_u32 s{t6}, s{t6}, {L_P}"); A(f"v_add_u32 v4, s{t6}, v4")
        A(f"v_lshrrev_b32 v5, 2, v{vN}"); A(f"v_mov_b32 v6, {L_Z}")
        for g in range(4):
            A(f"v_cmp_eq_u32 vcc, {g}, v5"); nop(2); A(f"v_cndmask_b32 v{16+g}, v6, v4, vcc")
        A(f"v_mov_b32 v4, {L_MW}")
        A(f"s_lshl_b32 s{t6}, s{sAW}, 4"); A(f"s_add_u32 s{t6}, s{t6}, {L_MW}"); A(f"v_mov_b32 v5, s{t6}")
        A(f"v_lshlrev_b32 v{vFA}, 2, v{vN}"); A(f"v_add_u32 v{vFA}, {L_F}, v{vFA}")
    def setup2():
        A(f"s_lshl_b32 s{t6}, s{sAW}, 11"); A(f"s_add_u32 s{t6}, s{t6}, {L_O}"); A(f"v_lshl_add_u32 v{vOW}, v0, 3, s{t6}")
        A(f"s_lshl_b32 s{t6}, s{sAW}, 9"); A(f"s_add_u32 s{t6}, s{t6}, {L_O}"); A(f"v_lshl_add_u32 v{vOR}, v0, 4, s{t6}")
        A(f"s_lshl_b32 s{t5}, s{sHKV}, 2"); A(f"s_add_u32 s{t5}, s{t5}, s{sAW}"); A(f"s_lshl_b32 s{t5}, s{t5}, 14")
        A(f"s_bfe_u32 s{t6}, s{sR}, 0x10002"); A(f"s_lshl_b32 s{t6}, s{t6}, 11"); A(f"s_add_u32 s{t5}, s{t5}, s{t6}")
        A(f"s_lshr_b32 s{t6}, s{sR}, 3"); A(f"s_lshl_b32 s{t6}, s{t6}, 6"); A(f"s_add_u32 s{t5}, s{t5}, s{t6}")
        A(f"s_and_b32 s{t6}, s{sR}, 3"); A(f"s_lshl_b32 s{t6}, s{t6}, 4"); A(f"s_add_u32 s{t5}, s{t5}, s{t6}"); A(f"s_add_u32 s{t5}, s{t5}, {WS_OP}")
        A(f"v_bfe_u32 v{vOS}, v0, 3, 2"); A(f"v_lshlrev_b32 v{vOS}, 12, v{vOS}"); A("v_and_b32 v7, 1, v0"); A(f"v_lshl_add_u32 v{vOS}, v7, 10, v{vOS}")
        A("v_bfe_u32 v7, v0, 1, 2"); A(f"v_lshl_add_u32 v{vOS}, v7, 8, v{vOS}")
        A("s_waitcnt lgkmcnt(0)")
        make_tag()
    def p_fetch():
        lds_spin("p", vFA, 7, "0x1e00")
        A(f"v_readlane_b32 s{sMODE}, v7, 4")
        for k in range(4): A(f"ds_read_b128 {R(PT+4*k,4)}, v4 offset:{16*k}")
        A(f"ds_read_b128 {R(FS,4)}, v5")
        for u in range(2):
            for g in range(4): A(f"ds_read_b128 {R(PA+16*u+4*g,4)}, v{16+g} offset:{64*u}")
        A(f"s_and_b32 s{sMODE}, s{sMODE}, 2")
    def p_fetch2():
        A(f"s_mov_b32 s{t7}, {LOG2E}")
        A("s_waitcnt lgkmcnt(0)")
        for u in range(2, 4):
            for g in range(4): A(f"ds_read_b128 {R(PA+16*u+4*g,4)}, v{16+g} offset:{64*u}")
        for h in range(4): A(f"v_max3_f32 v{PT+h}, v{PT+h}, v{PT+4+h}, v{PT+8+h}")
        for h in range(4): A(f"v_max_f32 v{PT+h}, v{PT+h}, v{PT+12+h}")
        for h in range(4): A(f"v_sub_f32 v{FS+h}, v{FS+h}, v{PT+h}")
        for h in range(4): A(f"v_mul_f32 v{FS+h}, s{t7}, v{FS+h}")
        for h in range(4): A(f"v_exp_f32 v{FS+h}, v{FS+h}")
    def perm1(u, e, i):
        A(f"v_perm_b32 v{PT+4*e+i}, v{VV+4*(8*u+2*i+1)+(e>>1)}, v{VV+4*(8*u+2*i)+(e>>1)}, s{sHI if e&1 else sLO}")
    def mf(u, e):
        acc = YY if e & 1 else XX
        first = (u == 0 and e < 2)
        A(f"v_mfma_f32_16x16x32_bf16 {R(acc,4)}, {R(PA+16*u+4*(e>>1),4)}, {R(PT+4*e,4)}, {'0' if first else R(acc,4)}")
    def pv_chunk(u, e0):
        for i in range(4): perm1(u, e0, i)
        for e in range(e0+1, e0+4):
            for i in range(4): perm1(u, e, i)
            mf(u, e-1)
        nop(2); mf(u, e0+3)
    pc = o['pchk']
    chunks = {pc+2: [(0, 0)], pc+3: [(0, 4)], pc+4: [(1, 0)], pc+5: [(1, 4)], 30: [(2, 0)], 31: [(2, 4)]}
    if o.get('pvlate') == 1: chunks = {pc+2: [(0, 0)], pc+3: [(0, 4)], pc+4: [(1, 0)], pc+5: [(1, 4)], 31: [(2, 0), (2, 4)]}
    if o.get('pvlate') == 2: chunks = {pc+2: [(0, 0)], pc+3: [(0, 4)], 31: [(1, 0), (1, 4), (2, 0), (2, 4)]}
    assert pc + 5 < 30
    for i in range(32):
        if i % 4 == 0:
            A(f"s_and_b32 s{t4}, s{sBLK}, 0x1ffff"); A(f"s_add_u32 s{t4}, s{t4}, s{sBASE}"); A(f"s_add_u32 s{sBLK}, s{sBLK}, 16384")
        wv = o['wv'] if i < o['vfree'] else o['wv2']
        if wv: A(f"s_waitcnt vmcnt({wv-1})")
        A(f"buffer_load_dwordx4 {R(VV+4*i,4)}, v20, {S4(rB)}, s{t4} offen offset:{1024*(i&3)}{KVF}")
        if i + 1 == o['kwait']:
            A(f"s_waitcnt vmcnt({o['kwait']})"); A("ds_write_b32 v21, v22")
            stamp(2)
        if i == o.get('vflag', 31):
            stamp(3)
            if o.get('vbar'): A("s_barrier")
            else: A("ds_write_b32 v21, v22 offset:64")
        if i == 12: setup1()
        if i == 13: setup2()
        if i == pc: p_fetch()
        if i == pc + 1: p_fetch2()
        for u, e0 in chunks.get(i, []):
            if e0 == 0: A(f"s_waitcnt vmcnt({i-(8*u+7)}) lgkmcnt(0)")
            pv_chunk(u, e0)
    for i in range(3):
        A(f"s_waitcnt vmcnt({6-2*i})")
        for e in range(8): perm1(3, e, i)
    A("s_waitcnt vmcnt(0)")
    stamp(7)
    for e in range(3): perm1(3, e, 3)
    for e in range(8):
        mf(3, e)
        if e + 3 < 8: perm1(3, e+3, 3)
    stamp(4)
    nop(7)
    for h in range(4): A(f"v_mul_f32 v{PT+2*h}, v{XX+h}, v{FS+h}")
    for h in range(4): A(f"v_mul_f32 v{PT+2*h+1}, v{YY+h}, v{FS+h}")
    for h in range(4): A(f"ds_write_b64 v{vOW}, {R(PT+2*h,2)} offset:{512*h}")
    A("s_waitcnt lgkmcnt(0)")
    A("s_barrier")
    A("s_mov_b32 exec_hi, 0")
    for k in range(4): A(f"ds_read_b128 {R(PT+8+4*k,4)}, v{vOR} offset:{2048*k}")
    A(f"v_mov_b32 v{PT+1}, s{sTAG}"); A(f"v_mov_b32 v{PT+3}, s{sTAG}")
    A("s_waitcnt lgkmcnt(2)")
    A(f"v_pk_add_f32 {R(PT+8,2)}, {R(PT+8,2)}, {R(PT+12,2)}"); A(f"v_pk_add_f32 {R(PT+10,2)}, {R(PT+10,2)}, {R(PT+14,2)}")
    A("s_waitcnt lgkmcnt(0)")
    A(f"v_pk_add_f32 {R(PT+16,2)}, {R(PT+16,2)}, {R(PT+20,2)}"); A(f"v_pk_add_f32 {R(PT+18,2)}, {R(PT+18,2)}, {R(PT+22,2)}")
    A(f"v_pk_add_f32 {R(PT+8,2)}, {R(PT+8,2)}, {R(PT+16,2)}"); A(f"v_pk_add_f32 {R(PT+10,2)}, {R(PT+10,2)}, {R(PT+18,2)}")
    A(f"v_cvt_pk_bf16_f32 v{PT}, v{PT+8}, v{PT+9}"); A(f"v_cvt_pk_bf16_f32 v{PT+2}, v{PT+10}, v{PT+11}")
    if o.get('notail', 0) < 3: store_mode("o", f"buffer_store_dwordx4 {R(PT,4)}, v{vOS}, {S4(rWS)}, s{t5} offen")
    if stamps:
        stamp(5)
        A(f"s_cmp_eq_u32 s{sWID}, 4"); A("s_cbranch_scc0 L_end")
        stamps_to_lds([(i, 10+i) for i in range(1, 8)])
    lab("L_end")
    A("s_endpgm")
    lab("L_codeend")
    L.append('.section .rodata,"a"'); L.append(".p2align 6"); L.append(f".amdhsa_kernel {NAME}_kernel")
    for s in ("next_free_vgpr 256", "next_free_sgpr 100", "accum_offset 256", "group_segment_fixed_size 0", "kernarg_size 96",
              "user_sgpr_count 2", "user_sgpr_kernarg_segment_ptr 1", "system_sgpr_workgroup_id_x 1",
              "float_denorm_mode_32 3", "float_denorm_mode_16_64 3"):
        L.append("  .amdhsa_" + s)
    L.append(".end_amdhsa_kernel")
    return "\n".join(L) + "\n"

if __name__ == "__main__":
    import json
    out = sys.argv[1]
    st = int(sys.argv[2]) if len(sys.argv) > 2 else 0
    opts = json.loads(sys.argv[3]) if len(sys.argv) > 3 else None
    open(out, "w").write(gen(st, opts))
```

```python
import sys, struct
NAME = "parallel_sum__sliding_block_cached__swiglu_ffn__decode"

def f2u(x): return struct.unpack("<I", struct.pack("<f", x))[0]
LOG2E = hex(f2u(1.4426950408889634))
TAGK, TAGC = 0x9E3779B1, 0x7F4A7C18

WS_EPOCH = 0
WS_QP = 0x1000
WS_GU = WS_QP + 512*1024
WS_PR = WS_GU + 448*1024
WS_ST = WS_PR + 32*1024
WS_OP = WS_ST + 16*1024
WS_H2 = WS_OP + 512*1024
WS_END = WS_H2 + 512*1024
L_Q = 131072
L_Z = L_Q + 1280
L_F = L_Z + 256
L_ST = L_F + 128
L_MW = L_ST + 128
L_P = L_MW + 64
L_O = L_P + 4*1280
L_X = L_O + 8192
L_S = L_X + 4096
assert L_P % 16 == 0 and L_O % 16 == 0 and L_X % 16 == 0

SPIN_MAX = 1 << 16
REPUB_AT = 12

def gen(stamps=False, opts=None):
    o = dict(wk=6, wv=6, vfree=28, pchk=19, kwait=7, oearly=6, lsleep=2, cpf='late', delay_h2=10, sleep_h2=0, jbmap=1, gser=1, xlast=4)
    if opts: o.update(opts)
    BIG = o.get('front', 'big') == 'big'
    NK = 2 if BIG else 4
    L_END = L_S + (256 if stamps else 0)
    HOF = o.get('hof', ' sc1 nt'); QOF = o.get('qof', ' sc1 nt')
    L = []
    def A(s): L.append("    " + s)
    def lab(s): L.append(s + ":")
    def C(s): L.append("    ; " + s)
    def nop(n): A(f"s_nop {n-1}")
    DPP = "row_mask:0xf bank_mask:0xf"
    sX, sK, sV, sWQ, sWO, sG, sU, sDN, sOUT, sDBG, sWS = 4, 6, 8, 10, 12, 16, 18, 20, 22, 24, 26
    sWID, sHKV, sR, sTAG = 28, 29, 30, 31
    rWS, rA, rB = 32, 36, 40
    sLO, sHI = 44, 45
    sSPIN = 46
    sH, sCB, sJB = 47, 48, 49
    t0, t1, t2, t3, t4, t5, t6, t7 = 50, 51, 52, 53, 54, 55, 56, 57
    mA, mB, mC = 58, 60, 62
    sEP, sMODE, sPOFF, sPUB = 14, 15, 3, 64
    sSTL, sTAGX, sGO = 65, 66, 67
    sPOF2 = 24
    sST = 68
    def stamp(i):
        if stamps: A(f"s_memrealtime s[{sST+2*i}:{sST+2*i+1}]")
    def stamps_to_lds(pairs):
        A("s_mov_b64 exec, -1")
        A("s_waitcnt lgkmcnt(0)")
        A(f"v_mov_b32 v6, {L_S}")
        for i, slot in pairs:
            A(f"v_mov_b32 v8, s{sST+2*i}"); A(f"v_mov_b32 v9, s{sST+2*i+1}")
            A(f"ds_max_u64 v6, v[8:9] offset:{8*slot}"); nop(2)
        A("s_waitcnt lgkmcnt(0)")
    def srd(r, p, nrec):
        A(f"s_mov_b32 s{r}, s{p}"); A(f"s_and_b32 s{r+1}, s{p+1}, 0xffff")
        A(f"s_mov_b32 s{r+2}, {nrec}"); A(f"s_mov_b32 s{r+3}, 0x20000")
    def R(a, n): return f"v[{a}:{a+n-1}]"
    def S4(r): return f"s[{r}:{r+3}]"
    def S2(r): return f"s[{r}:{r+1}]"
    vSLAB, vN = 2, 3
    def load_epoch():
        A(f"s_load_dword s{sEP}, s[{sWS}:{sWS+1}], {WS_EPOCH}")
    def make_tag():
        A(f"s_mul_i32 s{sTAG}, s{sEP}, {hex(TAGK)}"); A(f"s_add_u32 s{sTAG}, s{sTAG}, {hex(TAGC)}"); A(f"s_andn2_b32 s{sTAG}, s{sTAG}, 7")
    def xsum_slabs(v, tmp, op="v_add_f32"):
        A(f"v_mov_b32 v{tmp}, v{v}"); nop(2)
        A(f"v_permlane16_swap_b32 v{v}, v{tmp}"); nop(1)
        A(f"{op} v{v}, v{v}, v{tmp}")
        A(f"v_mov_b32 v{tmp}, v{v}"); nop(2)
        A(f"v_permlane32_swap_b32 v{v}, v{tmp}"); nop(1)
        A(f"{op} v{v}, v{v}, v{tmp}")
    def dpp_op(op, v, ctl):
        nop(2); A(f"{op}_dpp v{v}, v{v}, v{v} {ctl} {DPP}")
    def bf16r(v):
        A(f"v_cvt_pk_bf16_f32 v{v}, v{v}, v{v}"); A(f"v_and_b32 v{v}, 0xffff0000, v{v}")
    def lds_spin(name, vaddr, vtmp, mask):
        A(f"s_mov_b32 s{sSPIN}, 0")
        lab(f"L_spin_{name}")
        A(f"ds_read_b32 v{vtmp}, v{vaddr}")
        A("s_waitcnt lgkmcnt(0)")
        A(f"v_cmp_ne_u32 vcc, 0, v{vtmp}")
        A(f"s_and_b32 s{t7}, vcc_lo, {mask}")
        A(f"s_cmp_eq_u32 s{t7}, {mask}")
        A(f"s_cbranch_scc1 L_spin_{name}_done")
        A(f"s_sleep {o['lsleep']}")
        A(f"s_add_u32 s{sSPIN}, s{sSPIN}, 1")
        A(f"s_cmp_lt_u32 s{sSPIN}, {SPIN_MAX*8}")
        A(f"s_cbranch_scc1 L_spin_{name}")
        lab(f"L_spin_{name}_done")
    def store_mode(name, instr):
        A(f"s_cmp_eq_u32 s{sMODE}, 0"); A(f"s_cbranch_scc0 L_sm_{name}")
        A(instr); A(f"s_branch L_sm_{name}_done")
        lab(f"L_sm_{name}")
        A(instr + " sc1")
        lab(f"L_sm_{name}_done")

    L.append(f"; @launch grid=(256,1,1) block=(512,1,1) lds={L_END}")
    L.append('.amdgcn_target "amdgcn-amd-amdhsa--gfx950"')
    L.append(".text"); L.append(f".globl {NAME}_kernel"); L.append(".p2align 12"); L.append(".p2align 8"); L.append(f".type {NAME}_kernel,@function")
    lab(f"{NAME}_kernel")
    A("s_load_dwordx16 s[4:19], s[0:1], 0")
    A("s_load_dwordx8 s[20:27], s[0:1], 64")
    stamp(0)
    A("v_lshrrev_b32 v1, 6, v0")
    A("v_and_b32 v0, 63, v0")
    A(f"s_and_b32 s{sHKV}, s2, 7")
    A(f"v_readfirstlane_b32 s{sWID}, v1")
    A(f"s_lshr_b32 s{sR}, s2, 3")
    A("s_cmp_ge_u32 s2, 256"); A("s_cbranch_scc1 L_end")
    A(f"v_lshrrev_b32 v{vSLAB}, 4, v0")
    A(f"v_and_b32 v{vN}, 15, v0")
    A(f"s_and_b32 s{sJB}, s{sR}, 24"); A(f"s_add_u32 s{sJB}, s{sJB}, s{sHKV}")
    A(f"s_cmp_lt_u32 s{sWID}, 4"); A("s_cbranch_scc1 L_front")
    C("---- attention waves 4..7: K stream into LDS")
    sAW, sBASE, sBLK, sLB = t0, t1, t2, t3
    A(f"s_sub_u32 s{sAW}, s{sWID}, 4")
    A(f"s_lshl_b32 s{sBASE}, s{sJB}, 5")
    A(f"s_and_b32 s{t4}, s{sR}, 7"); A(f"s_add_u32 s{sBASE}, s{sBASE}, s{t4}"); A(f"s_add_u32 s{sBASE}, s{sBASE}, 24"); A(f"s_lshl_b32 s{sBASE}, s{sBASE}, 17")
    A(f"s_add_u32 s{sBLK}, s{sR}, s{sAW}")
    A(f"s_lshl_b32 s{sBLK}, s{sBLK}, 12")
    A(f"s_lshl_b32 s{sLB}, s{sAW}, 15")
    A(f"v_lshlrev_b32 v4, 2, v{vSLAB}"); A(f"v_xor_b32 v4, v4, v{vN}"); A(f"v_lshlrev_b32 v5, 4, v{vSLAB}")
    A("v_or_b32 v4, v4, v5"); A("v_lshlrev_b32 v16, 4, v4")
    for a in range(1, 4): A(f"v_xor_b32 v{16+a}, {16*a}, v16")
    A(f"s_mov_b32 s{t5}, s{sBLK}"); A(f"s_mov_b32 m0, s{sLB}"); A(f"s_add_u32 s{sLB}, s{sLB}, 32768")
    A(f"s_brev_b32 s{rA+2}, 16"); A(f"s_mov_b32 s{rA+3}, 0x20000")
    def kgrp(w_):
        A(f"s_and_b32 s{t4}, s{t5}, 0x1ffff"); A(f"s_add_u32 s{t4}, s{t4}, s{sBASE}")
        for a in range(4):
            if w_: A(f"s_waitcnt vmcnt({w_-1})")
            A(f"buffer_load_dwordx4 v{16+a}, {S4(rA)}, s{t4} offen offset:{1024*a} nt lds")
        A(f"s_add_u32 s{t5}, s{t5}, 16384"); A("s_add_u32 m0, m0, 4096")
    A("s_waitcnt lgkmcnt(0)")
    A(f"s_mov_b32 s{rA}, s{sK}"); A(f"s_and_b32 s{rA+1}, s{sK+1}, 0xffff")
    stamp(6)
    A("s_barrier")
    load_epoch()
    if o.get('wkh'):
        A(f"s_lshr_b32 s{t4}, s{sR}, 1"); A(f"s_cmp_eq_u32 s{t4}, {4 if o.get('flip', 1) else 5}"); A("s_cbranch_scc1 L_kloop_h")
    lab("L_kloop")
    kgrp(o['wk'])
    A(f"s_cmp_lt_u32 m0, s{sLB}"); A("s_cbranch_scc1 L_kloop")
    A("s_branch L_att")
    if o.get('wkh'):
        lab("L_kloop_h")
        kgrp(o['wkh'])
        A(f"s_cmp_lt_u32 m0, s{sLB}"); A("s_cbranch_scc1 L_kloop_h")
        A("s_branch L_att")

    lab("L_front")
    C("---- service waves: 128x64 tile of wq (waves 0,1) and of w_gate/w_up (waves 2,3), 64 rows per wave")
    if o['jbmap'] == 1:
        A(f"s_lshr_b32 s{sJB}, s{sHKV}, 1"); A(f"s_mul_i32 s{sJB}, s{sJB}, 7"); A(f"s_lshr_b32 s{t5}, s{sR}, 3")
        A(f"s_add_u32 s{t6}, s{t5}, 3"); A(f"s_max_u32 s{t6}, s{t6}, 4"); A(f"s_cmp_eq_u32 s{t5}, 1"); A(f"s_cselect_b32 s{t6}, -64, s{t6}")
        A(f"s_bitcmp1_b32 s{sHKV}, 0"); A(f"s_cselect_b32 s{t5}, s{t6}, s{t5}"); A(f"s_add_u32 s{sJB}, s{sJB}, s{t5}")
    else:
        A(f"s_sub_u32 s{sJB}, s{sJB}, 4")
    sSTR, sTOFF, sPPI, sKH = t0, t1, t3, t4
    XS, XA, T, F, D = 8, 24, 40, 72, 104
    PB, vPA = 224, 240
    vFL, vT0, vT1, vT2 = 4, 5, 6, 7
    vA0, vA2 = 241, 242
    A(f"v_lshlrev_b32 v{vT0}, 2, v0"); A(f"v_add_u32 v{vT0}, {L_Z}, v{vT0}"); A(f"v_mov_b32 v{vT1}, 0")
    A(f"ds_write_b32 v{vT0}, v{vT1}"); A(f"ds_write_b32 v{vT0}, v{vT1} offset:128")
    if stamps: A(f"ds_write_b32 v{vT0}, v{vT1} offset:{L_S-L_Z}")
    def code_pf():
        C("pull one line of the code into L2")
        A(f"s_getpc_b64 s[{t6}:{t7}]")
        lab("L_pc")
        A(f"s_sub_u32 s{t6}, s{t6}, L_pc-{NAME}_kernel"); A(f"s_subb_u32 s{t7}, s{t7}, 0")
        A(f"s_lshl2_add_u32 s{t2}, s{sR}, s{sWID}"); A(f"s_lshl_b32 s{t2}, s{t2}, 7")
        if o['cpf'] == 'scalar':
            A(f"s_min_u32 s{t2}, s{t2}, L_codeend-{NAME}_kernel-4")
            A(f"s_load_dword s98, s[{t6}:{t7}], s{t2}")
        else:
            A(f"v_and_b32 v{vT2}, 1, v0"); A(f"v_lshl_add_u32 v{vT2}, v{vT2}, 6, s{t2}")
            A(f"v_min_u32 v{vT2}, L_codeend-{NAME}_kernel-4, v{vT2}")
            A(f"global_load_dword v254, v{vT2}, s[{t6}:{t7}]")
    if o['cpf'] == 'early': code_pf()
    A(f"v_lshlrev_b32 v{vA0}, 4, v0")
    A(f"v_lshrrev_b32 v{vA2}, 3, v{vN}"); A(f"v_lshl_add_u32 v{vA2}, v{vA2}, 2, v{vSLAB}")
    A(f"v_and_b32 v{vT2}, 7, v{vN}")
    def qblock(d, tmp):
        if BIG:
            A(f"s_lshr_b32 s{d}, s{sR}, 3"); A(f"s_bfe_u32 s{tmp}, s{sR}, 0x10001")
            if o.get('flip', 1): A(f"s_xor_b32 s{tmp}, s{tmp}, 1")
            A(f"s_lshl1_add_u32 s{d}, s{d}, s{tmp}")
        else: A(f"s_lshr_b32 s{d}, s{sR}, 2")
        A(f"s_lshl3_add_u32 s{d}, s{sHKV}, s{d}")
    def isgu():
        if BIG: A(f"s_bitcmp1_b32 s{sR}, 2")
        else: A(f"s_cmp_ge_u32 s{sWID}, 2")
    if BIG:
        A(f"s_and_b32 s{sKH}, s{sR}, 1"); A(f"s_lshl2_add_u32 s{sKH}, s{sKH}, s{sWID}")
    else:
        A(f"s_and_b32 s{sKH}, s{sR}, 3"); A(f"s_and_b32 s{t6}, s{sWID}, 1"); A(f"s_lshl1_add_u32 s{sKH}, s{sKH}, s{t6}")
    qblock(t5, t6)
    A(f"s_max_i32 s{t7}, s{sJB}, 0")
    A(f"s_cmp_lt_i32 s{sJB}, 0"); A(f"s_cselect_b32 s{t2}, 0, {512*3584}")
    isgu()
    A(f"s_cselect_b32 s{t5}, s{t7}, s{t5}")
    A(f"s_cselect_b32 s{rA+2}, s{t2}, 0x400000")
    A(f"s_movk_i32 s{t6}, 3584"); A(f"s_cselect_b32 s{sSTR}, s{t6}, 0x2000")
    A(f"s_lshl_b32 s{t6}, s{sKH}, 6"); A(f"s_mul_i32 s{sTOFF}, s{t6}, s{sSTR}")
    A(f"s_lshl_b32 s{t6}, s{t5}, 7"); A(f"s_add_u32 s{sTOFF}, s{sTOFF}, s{t6}")
    A(f"s_lshl_b32 s{t6}, s{sSTR}, 3")
    A(f"v_mul_lo_u32 v{vA2}, v{vA2}, s{t6}"); A(f"v_lshl_add_u32 v{vA2}, v{vT2}, 4, v{vA2}")
    A(f"s_mov_b32 s{rA+3}, 0x20000"); A(f"s_movk_i32 s{rB+2}, 4096"); A(f"s_mov_b32 s{rB+3}, 0x20000")
    A(f"s_lshl_b32 s{t5}, s{sWID}, 10")
    A("s_waitcnt lgkmcnt(0)")
    A(f"s_mov_b32 s{rB}, s{sX}"); A(f"s_and_b32 s{rB+1}, s{sX+1}, 0xffff")
    stamp(12)
    xl = o.get('xlast', 0)
    if not xl: A(f"buffer_load_dwordx4 {R(XS,4)}, v{vA0}, {S4(rB)}, s{t5} offen")
    A(f"s_bitcmp1_b32 s{sR}, {1 if BIG else 2}")
    A(f"s_cselect_b64 {S2(rA)}, {S2(sU)}, {S2(sG)}")
    isgu()
    A(f"s_cselect_b64 {S2(rA)}, {S2(rA)}, {S2(sWQ)}")
    A(f"s_and_b32 s{rA+1}, s{rA+1}, 0xffff")
    for j in range(8):
        A(f"buffer_load_dwordx4 {R(T+4*j,4)}, v{vA2}, {S4(rA)}, s{sTOFF} offen nt")
        if j < 7: A(f"s_add_u32 s{sTOFF}, s{sTOFF}, s{sSTR}")
        if xl and j == xl - 1: A(f"buffer_load_dwordx4 {R(XS,4)}, v{vA0}, {S4(rB)}, s{t5} offen")
    load_epoch()
    stamp(11)
    A("s_barrier")
    stamp(2)
    if o['cpf'] in ('scalar', 'late'): code_pf()
    nl = 1 if o['cpf'] == 'late' else 0
    A(f"s_mov_b32 s{sLO}, 0x05040100"); A(f"s_mov_b32 s{sHI}, 0x07060302")
    srd(rWS, sWS, WS_END)
    A(f"s_and_b32 s{sCB}, s{sR}, 7")
    A(f"s_lshl_b32 s{sSTL}, s{sHKV}, 12"); A(f"s_add_u32 s{sSTL}, s{sSTL}, {WS_PR}")
    A(f"s_and_b32 s{t1}, s{sR}, {NK-1}"); A(f"s_lshl_b32 s{sPOFF}, s{t1}, 17"); qblock(t1, t2)
    A(f"s_lshl_b32 s{t1}, s{t1}, 9"); A(f"s_add_u32 s{sPOFF}, s{sPOFF}, s{t1}"); A(f"s_add_u32 s{sPOFF}, s{sPOFF}, {WS_QP}")
    A(f"s_and_b32 s{t1}, s{sR}, {2*NK-1}")
    A(f"s_mul_i32 s{sPOF2}, s{t1}, {4*14336}"); A(f"s_max_i32 s{t1}, s{sJB}, 0"); A(f"s_lshl_b32 s{t1}, s{t1}, 9"); A(f"s_add_u32 s{sPOF2}, s{sPOF2}, s{t1}"); A(f"s_add_u32 s{sPOF2}, s{sPOF2}, {WS_GU}")
    if o.get('ppt'):
        C("make the lines this WG will publish valid in L2 first (one load per wave)")
        A(f"s_lshl_b32 s{t1}, s{sHKV}, 5"); A(f"s_add_u32 s{t1}, s{t1}, s{sR}")
        A(f"s_lshl_b32 s{t2}, s{t1}, 7"); A(f"s_add_u32 s{t2}, s{t2}, {WS_PR}")
        A(f"s_lshl_b32 s{t5}, s{t1}, 11"); A(f"s_add_u32 s{t5}, s{t5}, {WS_OP}")
        A(f"s_mov_b32 s{t6}, 0x8000"); A(f"s_mov_b32 s{t7}, s{sPOFF}")
        A(f"s_cmp_eq_u32 s{sWID}, 1"); A(f"s_cselect_b32 s{t6}, 14336, s{t6}"); A(f"s_cselect_b32 s{t7}, s{sPOF2}, s{t7}")
        A(f"s_cmp_eq_u32 s{sWID}, 3"); A(f"s_cselect_b32 s{t6}, 512, s{t6}"); A(f"s_cselect_b32 s{t7}, s{t5}, s{t7}")
        A(f"s_cmp_eq_u32 s{sWID}, 2"); A(f"s_cselect_b32 s{t6}, 0, s{t6}"); A(f"s_cselect_b32 s{t7}, s{t2}, s{t7}"); A(f"s_cselect_b32 s{t1}, 3, 15")
        A(f"v_and_b32 v{vT0}, s{t1}, v{vN}"); A(f"v_lshlrev_b32 v{vT0}, 5, v{vT0}"); A(f"v_mad_u32_u24 v255, v{vSLAB}, s{t6}, v{vT0}")
        A(f"v_add_u32 v255, s{t7}, v255")
        if o.get('ppt_o', 1) == 0:
            A(f"s_cmp_eq_u32 s{sWID}, 3"); A(f"s_cselect_b64 exec, 1, -1")
        A(f"buffer_load_dword v254, v255, {S4(rWS)}, 0 offen{o['ppt']}")
        if o.get('ppt_o', 1) == 0: A("s_mov_b64 exec, -1")
        nl += 1
    A(f"v_and_b32 v{vFL}, 31, v0"); A(f"v_lshlrev_b32 v{vFL}, 2, v{vFL}"); A(f"v_add_u32 v{vFL}, {L_F}, v{vFL}")
    A(f"s_waitcnt vmcnt({8-xl+nl})")
    C("layernorm of batch row w")
    for i in range(4):
        A(f"v_lshlrev_b32 v{F+2*i}, 16, v{XS+i}"); A(f"v_and_b32 v{F+2*i+1}, 0xffff0000, v{XS+i}")
    AC, MU, TM, VR, RC, G = 12, 16, 18, 19, 20, F + 8
    def wave_sum(v):
        for ctl in ("quad_perm:[1,0,3,2]", "quad_perm:[2,3,0,1]", "row_ror:4", "row_ror:8"): dpp_op("v_add_f32", v, ctl)
        xsum_slabs(v, TM)
    A(f"v_pk_add_f32 {R(AC,2)}, {R(F,2)}, {R(F+2,2)}"); A(f"v_pk_add_f32 {R(AC+2,2)}, {R(F+4,2)}, {R(F+6,2)}")
    A(f"v_pk_add_f32 {R(AC,2)}, {R(AC,2)}, {R(AC+2,2)}")
    A(f"v_add_f32 v{MU}, v{AC}, v{AC+1}")
    wave_sum(MU)
    A(f"v_mul_f32 v{MU}, {hex(f2u(1/512))}, v{MU}"); A(f"v_mov_b32 v{MU+1}, v{MU}")
    for i in range(4): A(f"v_pk_add_f32 {R(G+2*i,2)}, {R(F+2*i,2)}, {R(MU,2)} neg_lo:[0,1] neg_hi:[0,1]")
    A(f"v_pk_mul_f32 {R(AC,2)}, {R(G,2)}, {R(G,2)}"); A(f"v_pk_mul_f32 {R(AC+2,2)}, {R(G+2,2)}, {R(G+2,2)}")
    A(f"v_pk_fma_f32 {R(AC,2)}, {R(G+4,2)}, {R(G+4,2)}, {R(AC,2)}"); A(f"v_pk_fma_f32 {R(AC+2,2)}, {R(G+6,2)}, {R(G+6,2)}, {R(AC+2,2)}")
    A(f"v_pk_add_f32 {R(AC,2)}, {R(AC,2)}, {R(AC+2,2)}")
    A(f"v_add_f32 v{VR}, v{AC}, v{AC+1}")
    wave_sum(VR)
    A(f"v_mul_f32 v{VR}, {hex(f2u(1/512))}, v{VR}")
    bf16r(MU); A(f"v_mov_b32 v{MU+1}, v{MU}")
    bf16r(VR)
    A(f"v_add_f32 v{VR}, {hex(f2u(1e-5))}, v{VR}"); bf16r(VR)
    A(f"v_sqrt_f32 v{VR}, v{VR}"); nop(1); bf16r(VR)
    A(f"v_rcp_f32 v{RC}, v{VR}"); nop(1)
    A(f"v_fma_f32 v{TM}, -v{VR}, v{RC}, 1.0"); A(f"v_fma_f32 v{RC}, v{TM}, v{RC}, v{RC}"); A(f"v_mov_b32 v{RC+1}, v{RC}")
    for i in range(4): A(f"v_pk_add_f32 {R(F+2*i,2)}, {R(F+2*i,2)}, {R(MU,2)} neg_lo:[0,1] neg_hi:[0,1]")
    for i in range(4): A(f"v_cvt_pk_bf16_f32 v{XS+i}, v{F+2*i}, v{F+2*i+1}")
    for i in range(4):
        A(f"v_lshlrev_b32 v{F+2*i}, 16, v{XS+i}"); A(f"v_and_b32 v{F+2*i+1}, 0xffff0000, v{XS+i}")
    for i in range(4): A(f"v_pk_mul_f32 {R(G+2*i,2)}, {R(F+2*i,2)}, {R(RC,2)}")
    for i in range(8): A(f"v_fma_f32 v{F+i}, -v{G+i}, v{VR}, v{F+i}")
    for i in range(4): A(f"v_pk_fma_f32 {R(G+2*i,2)}, {R(F+2*i,2)}, {R(RC,2)}, {R(G+2*i,2)}")
    for i in range(4): A(f"v_cvt_pk_bf16_f32 v{XS+i}, v{G+2*i}, v{G+2*i+1}")
    XP = 1024 + 32
    A(f"s_mul_i32 s{t5}, s{sWID}, {XP}"); A(f"s_add_u32 s{t5}, s{t5}, {L_O}"); A(f"v_add_u32 v{vT0}, s{t5}, v{vA0}")
    A(f"ds_write_b128 v{vT0}, {R(XS,4)}")
    vFW, vONE = 252, 253
    A(f"s_lshl_b32 s{t5}, s{sWID}, 2"); A(f"s_add_u32 s{t5}, s{t5}, {L_F}")
    A(f"v_mov_b32 v{vFW}, s{t5}"); A(f"v_mov_b32 v{vONE}, 1")
    A(f"v_lshrrev_b32 v{vT1}, 2, v{vN}"); A(f"v_mul_u32_u24 v{vT1}, {XP}, v{vT1}")
    A(f"v_and_b32 v{vT2}, 1, v{vN}"); A(f"v_lshl_add_u32 v{vT2}, v{vT2}, 2, v{vSLAB}"); A(f"v_lshl_add_u32 v{vT1}, v{vT2}, 4, v{vT1}")
    A(f"s_lshl_b32 s{t5}, s{sKH}, 7"); A(f"s_add_u32 s{t5}, s{t5}, {L_O}"); A(f"v_add_u32 v{vT1}, s{t5}, v{vT1}")
    A("s_waitcnt lgkmcnt(0)")
    A(f"ds_write_b32 v{vFW}, v{vONE} offset:80")
    make_tag()
    lds_spin("x", vFL, vT0, "0xf00000")
    A(f"ds_read_b128 {R(XA,4)}, v{vT1}")
    A(f"s_waitcnt vmcnt({nl}) lgkmcnt(0)")
    C("projection MFMAs")
    def perms(e):
        for i in range(4):
            A(f"v_perm_b32 v{F+4*e+i}, v{T+4*(2*i+1)+(e>>1)}, v{T+4*(2*i)+(e>>1)}, s{sHI if e&1 else sLO}")
    def mfp(e):
        A(f"v_mfma_f32_16x16x32_bf16 {R(D+4*e,4)}, {R(XA,4)}, {R(F+4*e,4)}, 0")
    perms(0)
    for e in range(1, 8):
        perms(e); mfp(e-1)
    nop(2); mfp(7)
    vPA2 = 243
    A(f"v_lshlrev_b32 v{vT0}, 4, v{vN}"); A(f"v_lshl_add_u32 v{vPA}, v{vSLAB}, 15, v{vT0}")
    A(f"s_lshl_b32 s{t5}, s{sWID}, 10"); A(f"s_add_u32 s{t5}, s{t5}, {L_X}"); A(f"v_add_u32 v{vT1}, s{t5}, v{vA0}")
    nop(2)
    for k in range(4):
        A(f"v_add_f32_dpp v{XS+k}, v{D+4*k+1}, v{D+4*k} row_ror:8 row_mask:0xf bank_mask:0x3")
    for k in range(4):
        A(f"v_add_f32_dpp v{XS+k}, v{D+16+4*k}, v{D+16+4*k+1} row_ror:8 row_mask:0xf bank_mask:0xc")
    A(f"s_lshr_b32 s{t0}, s{sR}, 3")
    A(f"s_lshl2_add_u32 s{sH}, s{sHKV}, s{t0}")
    A(f"s_getreg_b32 s{sTAGX}, hwreg(HW_REG_XCC_ID, 0, 3)"); A(f"s_or_b32 s{sTAGX}, s{sTAGX}, s{sTAG}")
    PR, vPRA, vPRL = 244, 248, 249
    vXR = 250
    A(f"s_lshl_b32 s{t1}, s{sR}, 7"); A(f"v_add_u32 v{vPRA}, s{t1}, v{vA0}")
    A(f"s_movk_i32 s{t1}, 14336"); A(f"v_mad_u32_u24 v{vPA2}, v{vSLAB}, s{t1}, v{vT0}")
    A(f"s_cmp_eq_u32 s{sWID}, 0"); A("s_cbranch_scc1 L_pw0")
    A(f"ds_write_b128 v{vT1}, {R(XS,4)}")
    A("s_waitcnt lgkmcnt(0)")
    A(f"ds_write_b32 v{vFW}, v{vONE} offset:96")
    lds_spin("go", vFL, vT0, "0x100")
    A("s_branch L_go")
    lab("L_pw0")
    lds_spin("d", vFL, vT0, "0xe000000")
    for k in range(1, 4): A(f"ds_read_b128 {R(XS+4*k,4)}, v{vT1} offset:{1024*k}")
    for k in range(8): A(f"v_mov_b32 v{PB+2*k+1}, s{sTAG}")
    for k in range(4): A(f"v_mov_b32 v{PR+k}, s{sTAGX}")
    A("s_waitcnt lgkmcnt(0)")
    for k in range(4): A(f"v_add_f32 v{PB+2*k}, v{XS+k}, v{XS+4+k}")
    for k in range(4): A(f"v_add_f32 v{PB+8+2*k}, v{XS+8+k}, v{XS+12+k}")
    if BIG:
        for k in range(4): A(f"v_add_f32 v{PB+2*k}, v{PB+2*k}, v{PB+8+2*k}")
    def proj_store(fl, nm):
        PG = PB if BIG else PB + 8
        if BIG: A(f"s_bitcmp1_b32 s{sR}, 2"); A(f"s_cbranch_scc1 L_gs{nm}")
        A(f"buffer_store_dwordx4 {R(PB,4)}, v{vPA}, {S4(rWS)}, s{sPOFF} offen{fl}")
        A(f"buffer_store_dwordx4 {R(PB+4,4)}, v{vPA}, {S4(rWS)}, s{sPOFF} offen offset:256{fl}")
        if BIG: A(f"s_branch L_nogs{nm}"); lab(f"L_gs{nm}")
        A(f"s_cmp_lt_i32 s{sJB}, 0"); A(f"s_cbranch_scc1 L_nogs{nm}")
        A(f"buffer_store_dwordx4 {R(PG,4)}, v{vPA2}, {S4(rWS)}, s{sPOF2} offen{fl}")
        A(f"buffer_store_dwordx4 {R(PG+4,4)}, v{vPA2}, {S4(rWS)}, s{sPOF2} offen offset:256{fl}")
        lab(f"L_nogs{nm}")
    def pres_store(fl):
        A("s_mov_b64 exec, 15")
        A(f"buffer_store_dwordx4 {R(PR,4)}, v{vPRA}, {S4(rWS)}, s{sSTL} offen{fl}")
        A("s_mov_b64 exec, -1")
    if not o.get('nopub'): proj_store("", "a")
    stamp(1)
    C("presence record (tag | XCC id); release the q gather once own stores are acknowledged")
    pres_store("")
    A("s_waitcnt vmcnt(0)")
    if o.get('godelay'): A(f"s_sleep {o['godelay']}")
    A(f"ds_write_b32 v{vFW}, v{vONE} offset:32")
    lab("L_go")
    if o.get('ppt2'):
        A(f"s_cmp_eq_u32 s{sWID}, 3"); A("s_cbranch_scc0 L_np2")
        A(f"buffer_load_dword v254, v255, {S4(rWS)}, 0 offen{o['ppt2']}")
        lab("L_np2")
    C("q gather: wave w <-> head w")
    QG = 8
    A(f"v_and_b32 v{vPRL}, 31, v0"); A(f"v_lshlrev_b32 v{vPRL}, 7, v{vPRL}")
    A(f"s_lshl_b32 s{t1}, s{t0}, 15"); A(f"s_lshl_b32 s{t2}, s{sHKV}, 12"); A(f"s_add_u32 s{t1}, s{t1}, s{t2}")
    A(f"s_lshl_b32 s{t2}, s{sWID}, 10"); A(f"s_add_u32 s{t1}, s{t1}, s{t2}"); A(f"s_add_u32 s{t1}, s{t1}, {WS_QP}")
    for k in range(1, NK): A(f"s_add_u32 s{t1+k}, s{t1}, {k<<17}")
    A(f"s_mov_b32 s{sSPIN}, 0"); A(f"s_mov_b32 s{sMODE}, 0")
    A(f"v_mov_b32 v24, s{sTAGX}")
    lab("L_qpoll")
    if o.get('noq'): A("s_branch L_qok")
    for k in range(NK):
        A(f"buffer_load_dwordx4 {R(QG+4*k,4)}, v{vA0}, {S4(rWS)}, s{t1+k} offen{QOF}")
        if o.get('qser') and k == 1: A("s_waitcnt vmcnt(0)")
    A(f"s_cmp_eq_u32 s{sWID}, 0"); A("s_cbranch_scc0 L_qnp")
    A(f"buffer_load_dword v24, v{vPRL}, {S4(rWS)}, s{sSTL} offen{QOF}")
    lab("L_qnp")
    A("s_waitcnt vmcnt(0)")
    for k in range(NK): A(f"v_bitop3_b32 v{QG+4*k+1}, v{QG+4*k+1}, v{QG+4*k+3}, s{sTAG} bitop3:0x7e")
    A(f"v_xor_b32 v25, s{sTAGX}, v24")
    QL = QG + 4*NK - 3
    if NK == 4: A(f"v_or3_b32 v{QG+1}, v{QG+1}, v{QG+5}, v{QG+9}")
    A(f"v_or3_b32 v26, v{QG+1}, v{QL}, v25")
    A("v_cmp_ne_u32 vcc, 0, v26")
    A("s_cbranch_vccz L_qok")
    C("slow path: a valid presence record from another XCD, or a long wait -> switch the group hand-offs to write-through")
    A(f"s_add_u32 s{sSPIN}, s{sSPIN}, 1")
    A(f"s_cmp_eq_u32 s{sWID}, 0"); A("s_cbranch_scc0 L_qretry")
    A("v_add_u32 v27, -1, v25"); A("v_cmp_gt_u32 vcc, 7, v27")
    A("s_cbranch_vccnz L_qrepub")
    A(f"s_cmp_lt_u32 s{sSPIN}, {REPUB_AT}"); A("s_cbranch_scc1 L_qretry")
    lab("L_qrepub")
    A(f"s_cmp_eq_u32 s{sMODE}, 0"); A("s_cbranch_scc0 L_qchk")
    A(f"s_mov_b32 s{sMODE}, 2")
    pres_store(" sc1")
    proj_store(" sc1", "b")
    lab("L_qchk")
    A("v_and_b32 v25, -8, v25"); A(f"v_or3_b32 v26, v{QG+1}, v{QL}, v25")
    A("v_cmp_ne_u32 vcc, 0, v26")
    A("s_cbranch_vccz L_qok")
    lab("L_qretry")
    A("s_sleep 1")
    A(f"s_cmp_lt_u32 s{sSPIN}, {SPIN_MAX}"); A("s_cbranch_scc1 L_qpoll")
    lab("L_qok")
    A(f"v_add_f32 v{QG}, v{QG}, v{QG+4}"); A(f"v_add_f32 v{QG+2}, v{QG+2}, v{QG+6}")
    if NK == 4:
        A(f"v_add_f32 v{QG+8}, v{QG+8}, v{QG+12}"); A(f"v_add_f32 v{QG+10}, v{QG+10}, v{QG+14}")
        A(f"v_add_f32 v{QG}, v{QG}, v{QG+8}"); A(f"v_add_f32 v{QG+2}, v{QG+2}, v{QG+10}")
    A(f"v_cvt_pk_bf16_f32 v{QG}, v{QG}, v{QG+2}")
    A(f"s_mul_i32 s{t1}, s{sWID}, 320"); A(f"s_add_u32 s{t1}, s{t1}, {L_Q}")
    A(f"v_and_b32 v{vT1}, 32, v0"); A(f"v_and_b32 v{vT2}, 7, v0"); A(f"v_lshl_add_u32 v{vT1}, v{vT2}, 2, v{vT1}")
    A(f"v_bfe_u32 v{vT2}, v0, 3, 1"); A(f"v_lshl_add_u32 v{vT1}, v{vT2}, 1, v{vT1}")
    A(f"v_and_b32 v{vT2}, 1, v{vSLAB}"); A(f"v_add_u32 v{vT1}, v{vT1}, v{vT2}")
    A(f"v_lshl_add_u32 v{vT1}, v{vT1}, 2, s{t1}")
    A(f"ds_write_b32 v{vT1}, v{QG}")
    A(f"s_or_b32 s{t2}, s{sMODE}, 1"); A(f"v_mov_b32 v{vT2}, s{t2}")
    A("s_waitcnt lgkmcnt(0)")
    A(f"ds_write_b32 v{vFW}, v{vT2} offset:16")
    stamp(3)
    C("residual x for the final sum; g/u gather: lane (kq | b | unit)")
    sRHO = 99
    A(f"s_lshl_b32 s{sRHO}, s{sHKV}, 5"); A(f"s_add_u32 s{sRHO}, s{sRHO}, s{sR}")
    A(f"v_and_b32 v{vT0}, 3, v0"); A(f"v_lshlrev_b32 v{vXR+1}, 2, v{vT0}")
    A(f"s_cmp_eq_u32 s{sWID}, 2"); A("s_cbranch_scc0 L_nox")
    A(f"s_lshl_b32 s{t1}, s{sRHO}, 4")
    A(f"buffer_load_dword v{vXR}, v{vXR+1}, {S4(rB)}, s{t1} offen")
    lab("L_nox")
    GU = 192
    vGA = 216
    sUO = 25
    A(f"v_lshrrev_b32 v{vT0}, 2, v0"); A(f"s_movk_i32 s{t1}, 14336"); A(f"v_mul_lo_u32 v{vT0}, v{vT0}, s{t1}")
    A(f"v_and_b32 v{vT1}, 3, v0"); A(f"v_lshl_add_u32 v{vGA}, v{vT1}, 4, v{vT0}")
    A(f"s_max_i32 s{t1}, s{sJB}, 0"); A(f"s_lshl_b32 s{sGO}, s{t1}, 9"); A(f"s_lshl_b32 s{t1}, s{sWID}, 6"); A(f"s_add_u32 s{sGO}, s{sGO}, s{t1}")
    A(f"s_add_u32 s{sGO}, s{sGO}, {WS_GU}"); A(f"s_add_u32 s{sUO}, s{sGO}, {16*14336}")
    def gu_loads():
        for k in range(NK):
            A(f"buffer_load_dwordx4 {R(GU+4*k,4)}, v{vGA}, {S4(rWS)}, s{sGO if k < 2 else sUO} offen offset:{256*(k&1)}{QOF}")
            if o.get('gser') and (k + 1) % o['gser'] == 0 and k < NK - 1: A("s_waitcnt vmcnt(0)")
    if o.get('nogu'): A("s_branch L_nogu")
    A(f"s_cmp_lt_i32 s{sJB}, 0"); A("s_cbranch_scc1 L_nogu")
    gu_loads()
    lab("L_nogu")
    C("tail addresses")
    vWA, vDA, vSA, vXW, vXR2, vHA, vZ = 220, 221, 222, 223, 217, 166, 167
    sWOo, sDNo, sSTo, sOPo, sH2o = 50, 52, 53, 54, 55
    TW, TD = 168, 184
    A(f"v_lshlrev_b32 v{vT0}, 3, v{vN}")
    A(f"v_lshl_add_u32 v{vWA}, v{vSLAB}, 15, v{vT0}"); A(f"v_lshl_add_u32 v{vDA}, v{vSLAB}, 13, v{vT0}")
    A(f"s_lshl_b32 s{sWOo}, s{sH}, 17"); A(f"s_lshl_b32 s{t7}, s{sWID}, 11"); A(f"s_add_u32 s{sWOo}, s{sWOo}, s{t7}")
    A(f"s_lshl_b32 s{t7}, s{sCB}, 7"); A(f"s_add_u32 s{sWOo}, s{sWOo}, s{t7}")
    A(f"s_max_i32 s{sDNo}, s{sJB}, 0"); A(f"s_lshl_b32 s{sDNo}, s{sDNo}, 16"); A(f"s_add_u32 s{sDNo}, s{sDNo}, s{t7}")
    A(f"s_and_b32 s{t7}, s{sWID}, 1"); A(f"s_lshl_b32 s{t7}, s{t7}, 15"); A(f"s_add_u32 s{sDNo}, s{sDNo}, s{t7}")
    A(f"s_lshr_b32 s{t7}, s{sWID}, 1"); A(f"s_lshl_b32 s{t7}, s{t7}, 12"); A(f"s_add_u32 s{sDNo}, s{sDNo}, s{t7}")
    srd(rA, sWO, 0x400000)
    A(f"s_mov_b32 s{rB}, s{sDN}"); A(f"s_and_b32 s{rB+1}, s{sDN+1}, 0xffff"); A(f"s_mov_b32 s{rB+3}, 0x20000")
    A(f"s_cmp_lt_i32 s{sJB}, 0"); A(f"s_cselect_b32 s{rB+2}, 0, {1792*1024}")
    A(f"v_and_b32 v{vT0}, 7, v{vN}"); A(f"v_lshlrev_b32 v{vT0}, 4, v{vT0}"); A(f"v_lshl_add_u32 v{vSA}, v{vSLAB}, 7, v{vT0}")
    A(f"s_lshl_b32 s{sSTo}, s{sH}, 9"); A(f"s_add_u32 s{sSTo}, s{sSTo}, {WS_ST}")
    A(f"s_lshl_b32 s{sOPo}, s{sH}, 14"); A(f"s_lshl_b32 s{t7}, s{sWID}, 12"); A(f"s_add_u32 s{sOPo}, s{sOPo}, s{t7}"); A(f"s_add_u32 s{sOPo}, s{sOPo}, {WS_OP}")
    A(f"s_lshl_b32 s{t7}, s{sWID}, 10"); A(f"s_add_u32 s{t7}, s{t7}, {L_X}"); A(f"v_add_u32 v{vXW}, s{t7}, v{vA0}")
    A(f"s_lshl_b32 s{t7}, s{sWID}, 9"); A(f"s_add_u32 s{t7}, s{t7}, {L_X}"); A(f"v_lshl_add_u32 v{vXR2}, v0, 3, s{t7}")
    A(f"v_lshrrev_b32 v{vT0}, 5, v0"); A(f"v_lshlrev_b32 v{vT0}, 17, v{vT0}")
    A(f"v_bfe_u32 v{vT1}, v0, 2, 3"); A(f"v_lshl_add_u32 v{vT0}, v{vT1}, 11, v{vT0}")
    A(f"v_and_b32 v{vT1}, 3, v0"); A(f"v_lshl_add_u32 v{vHA}, v{vT1}, 4, v{vT0}")
    A(f"s_lshl_b32 s{sH2o}, s{sWID}, 18"); A(f"s_lshl_b32 s{t7}, s{sCB}, 14"); A(f"s_add_u32 s{sH2o}, s{sH2o}, s{t7}")
    A(f"s_lshl_b32 s{t7}, s{sH}, 6"); A(f"s_add_u32 s{sH2o}, s{sH2o}, s{t7}"); A(f"s_add_u32 s{sH2o}, s{sH2o}, {WS_H2}")
    A(f"v_mov_b32 v{vZ}, 0")
    C("wait K_w landed and all q heads")
    A(f"s_lshl_b32 s{t1}, 1, s{sWID}"); A(f"s_or_b32 s{t1}, s{t1}, 0xf0")
    lds_spin("kq", vFL, vT0, f"s{t1}")
    A(f"v_readlane_b32 s{sMODE}, v{vT0}, 4"); A(f"s_and_b32 s{sMODE}, s{sMODE}, 2")
    stamp(4)
    QM, KF, vQA = 8, 72, 140
    A(f"v_and_b32 v{vT0}, 3, v{vN}"); A(f"v_mul_u32_u24 v{vT0}, 320, v{vT0}"); A(f"v_lshl_add_u32 v{vT0}, v{vSLAB}, 4, v{vT0}")
    A(f"v_add_u32 v{vT1}, {L_Q}, v{vT0}")
    A(f"v_lshrrev_b32 v{vT2}, 2, v{vN}")
    A(f"v_mov_b32 v{vQA+4}, {L_Z}")
    for u in range(4):
        A(f"v_cmp_eq_u32 vcc, {u}, v{vT2}"); nop(2)
        A(f"v_cndmask_b32 v{vQA+u}, v{vQA+4}, v{vT1}, vcc")
    for u in range(4):
        for c in range(4): A(f"ds_read_b128 {R(QM+16*u+4*c,4)}, v{vQA+u} offset:{64*c}")
        if u == 1: A("s_waitcnt lgkmcnt(4)")
    vKA = 146
    A(f"v_and_b32 v{vT1}, 3, v{vN}"); A(f"v_lshl_add_u32 v{vT1}, v{vT1}, 2, v{vT2}"); A(f"v_lshlrev_b32 v{vT1}, 8, v{vT1}")
    A(f"s_lshl_b32 s{t1}, s{sWID}, 15"); A(f"v_add_u32 v{vT1}, s{t1}, v{vT1}")
    A(f"v_xor_b32 v{vT2}, v{vSLAB}, v{vN}")
    for c in range(4):
        A(f"v_xor_b32 v{vKA+c}, {4*c}, v{vT2}"); A(f"v_lshl_add_u32 v{vKA+c}, v{vKA+c}, 4, v{vT1}")
    SD = 152
    def kread(i):
        gi, c = i >> 2, i & 3
        A(f"ds_read_b128 {R(KF+4*(i&15),4)}, v{vKA+c} offset:{gi*4096}")
    A("s_waitcnt lgkmcnt(0)")
    for i in range(12): kread(i)
    for i in range(32):
        gi, c = i >> 2, i & 3
        u, jh = gi >> 1, gi & 1
        A(f"s_waitcnt lgkmcnt({min(32, i + 12) - i - 1})")
        first = (u == 0 and c == 0)
        A(f"v_mfma_f32_16x16x32_bf16 {R(SD+4*jh,4)}, {R(KF+4*(i&15),4)}, {R(QM+16*u+4*c,4)}, {'0' if first else R(SD+4*jh,4)}")
        if i + 12 < 32: kread(i + 12)
    nop(8)
    C("scores: round to bf16, scale, round; softmax numerator")
    SP = 160
    A(f"s_mov_b32 s{t1}, {hex(f2u(128**-0.5))}"); A(f"s_mov_b32 s{t7}, {LOG2E}")
    for i in range(4): A(f"v_cvt_pk_bf16_f32 v{SP+i}, v{SD+2*i}, v{SD+2*i+1}")
    for i in range(4):
        A(f"v_lshlrev_b32 v{SD+2*i}, 16, v{SP+i}"); A(f"v_and_b32 v{SD+2*i+1}, 0xffff0000, v{SP+i}")
    for i in range(8): A(f"v_mul_f32 v{SD+i}, s{t1}, v{SD+i}")
    for i in range(4): A(f"v_cvt_pk_bf16_f32 v{SP+i}, v{SD+2*i}, v{SD+2*i+1}")
    for i in range(4):
        A(f"v_lshlrev_b32 v{SD+2*i}, 16, v{SP+i}"); A(f"v_and_b32 v{SD+2*i+1}, 0xffff0000, v{SP+i}")
    MX, SM = 164, 165
    A(f"v_max3_f32 v{MX}, v{SD}, v{SD+1}, v{SD+2}"); A(f"v_max3_f32 v{SM}, v{SD+3}, v{SD+4}, v{SD+5}")
    A(f"v_max3_f32 v{MX}, v{MX}, v{SD+6}, v{SD+7}"); A(f"v_max_f32 v{MX}, v{MX}, v{SM}")
    dpp_op("v_max_f32", MX, "row_ror:4"); dpp_op("v_max_f32", MX, "row_ror:8")
    xsum_slabs(MX, vT0, "v_max_f32")
    for i in range(8): A(f"v_sub_f32 v{SD+i}, v{SD+i}, v{MX}")
    for i in range(8): A(f"v_mul_f32 v{SD+i}, s{t7}, v{SD+i}")
    for i in range(8): A(f"v_exp_f32 v{SD+i}, v{SD+i}")
    nop(1)
    for i in range(4): A(f"v_cvt_pk_bf16_f32 v{SP+i}, v{SD+2*i}, v{SD+2*i+1}")
    A(f"v_add_f32 v{SM}, v{SD}, v{SD+1}"); A(f"v_add_f32 v{vT0}, v{SD+2}, v{SD+3}")
    A(f"v_add_f32 v{vT1}, v{SD+4}, v{SD+5}"); A(f"v_add_f32 v{vT2}, v{SD+6}, v{SD+7}")
    A(f"v_add_f32 v{SM}, v{SM}, v{vT0}"); A(f"v_add_f32 v{vT1}, v{vT1}, v{vT2}"); A(f"v_add_f32 v{SM}, v{SM}, v{vT1}")
    A(f"v_and_b32 v{vT0}, 3, v{vN}"); A(f"v_mul_u32_u24 v{vT1}, 320, v{vT0}"); A(f"v_lshl_add_u32 v{vT1}, v{vSLAB}, 4, v{vT1}")
    A(f"v_and_b32 v{vT2}, 12, v{vN}"); A(f"v_lshl_add_u32 v{vT1}, v{vT2}, 4, v{vT1}")
    A(f"s_mul_i32 s{t1}, s{sWID}, 1280"); A(f"s_add_u32 s{t1}, s{t1}, {L_P}"); A(f"v_add_u32 v{vT1}, s{t1}, v{vT1}")
    A(f"ds_write_b128 v{vT1}, {R(SP,4)}")
    dpp_op("v_add_f32", SM, "row_ror:4"); dpp_op("v_add_f32", SM, "row_ror:8")
    xsum_slabs(SM, vT2)
    A(f"s_lshl_b32 s{t1}, s{sWID}, 2"); A(f"s_add_u32 s{t1}, s{t1}, {L_ST}"); A(f"v_lshl_add_u32 v{vT1}, v{vT0}, 4, s{t1}")
    A(f"s_lshl_b32 s{t1}, s{sWID}, 4"); A(f"s_add_u32 s{t1}, s{t1}, {L_MW}"); A(f"v_lshl_add_u32 v{vT2}, v{vT0}, 2, s{t1}")
    A(f"ds_write_b32 v{vT1}, v{MX}"); A(f"ds_write_b32 v{vT1}, v{SM} offset:64"); A(f"ds_write_b32 v{vT2}, v{MX}")
    A("s_waitcnt vmcnt(0) lgkmcnt(0)")
    A(f"ds_write_b32 v{vFW}, v{vONE} offset:36")
    stamp(5)
    A(f"s_cmp_eq_u32 s{sWID}, 3"); A("s_cbranch_scc0 L_nostat")
    C("wave 3: WG-level softmax stats publish")
    lds_spin("st", vFL, vT0, "0x1e00")
    A(f"v_and_b32 v{vT0}, 3, v0"); A(f"v_lshlrev_b32 v{vT0}, 4, v{vT0}"); A(f"v_add_u32 v{vT1}, {L_ST}, v{vT0}")
    A(f"ds_read_b128 {R(8,4)}, v{vT1}"); A(f"ds_read_b128 {R(12,4)}, v{vT1} offset:64")
    A(f"s_mov_b32 s{t7}, {LOG2E}")
    A("s_waitcnt lgkmcnt(0)")
    A("v_max3_f32 v16, v8, v9, v10"); A("v_max_f32 v16, v16, v11")
    for i in range(4): A(f"v_sub_f32 v{8+i}, v{8+i}, v16")
    for i in range(4): A(f"v_mul_f32 v{8+i}, s{t7}, v{8+i}")
    for i in range(4): A(f"v_exp_f32 v{8+i}, v{8+i}")
    A(f"v_mov_b32 v17, s{sTAG}"); A(f"v_mov_b32 v19, s{sTAG}")
    A("v_mul_f32 v18, v8, v12")
    for i in range(1, 4): A(f"v_fmac_f32 v18, v{8+i}, v{12+i}")
    A(f"v_lshlrev_b32 v{vT0}, 5, v{vT0}")
    A(f"s_lshl_b32 s{t7}, s{sHKV}, 11"); A(f"s_lshl_b32 s{t1}, s{sR}, 4"); A(f"s_add_u32 s{t7}, s{t7}, s{t1}"); A(f"s_add_u32 s{t7}, s{t7}, {WS_ST}")
    A("s_mov_b64 exec, 15")
    store_mode("st", f"buffer_store_dwordx4 v[16:19], v{vT0}, {S4(rWS)}, s{t7} offen")
    A("s_mov_b64 exec, -1")
    lab("L_nostat")
    C("g/u check + FFN hidden activations")
    AH = 218
    A(f"v_mov_b32 v{AH}, 0"); A(f"v_mov_b32 v{AH+1}, 0")
    if o.get('nogu'): A("s_branch L_noffn")
    A(f"s_cmp_lt_i32 s{sJB}, 0"); A("s_cbranch_scc1 L_noffn")
    A(f"s_mov_b32 s{sSPIN}, 0")
    lab("L_gupoll")
    for k in range(NK): A(f"v_bitop3_b32 v{GU+4*k+1}, v{GU+4*k+1}, v{GU+4*k+3}, s{sTAG} bitop3:0x7e")
    if NK == 4: A(f"v_or3_b32 v{GU+1}, v{GU+1}, v{GU+9}, v{GU+13}")
    A(f"v_or_b32 v{GU+1}, v{GU+1}, v{GU+5}")
    A(f"v_cmp_ne_u32 vcc, 0, v{GU+1}")
    A("s_cbranch_vccz L_guok")
    A(f"s_add_u32 s{sSPIN}, s{sSPIN}, 1"); A(f"s_cmp_lt_u32 s{sSPIN}, {SPIN_MAX}"); A("s_cbranch_scc0 L_guok")
    gu_loads()
    A("s_waitcnt vmcnt(0)")
    A("s_branch L_gupoll")
    lab("L_guok")
    v8 = [GU + 2*i for i in range(8)]
    vals = v8[:4]
    GG, UU = 208, 212
    if BIG:
        for v in vals: A(f"v_mov_b32 v{v+1}, v{v}")
        for v in vals: A(f"v_permlane16_swap_b32 v{v}, v{v+1}")
        for i, v in enumerate(vals): A(f"v_add_f32 v{GG+i}, v{v}, v{v+1}")
        for i in range(4): A(f"v_cvt_pk_bf16_f32 v{GG+i}, v{GG+i}, v{GG+i}")
        for i in range(4): A(f"v_and_b32 v{GG+i}, 0xffff0000, v{GG+i}")
        for i in range(4): A(f"v_mov_b32 v{UU+i}, v{GG+i}")
        for i in range(4): A(f"v_permlane32_swap_b32 v{GG+i}, v{UU+i}")
    else:
        for v in v8: A(f"v_mov_b32 v{v+1}, v{v}")
        for v in v8: A(f"v_permlane16_swap_b32 v{v}, v{v+1}")
        for v in v8: A(f"v_add_f32 v{v}, v{v}, v{v+1}")
        for v in v8: A(f"v_mov_b32 v{v+1}, v{v}")
        for v in v8: A(f"v_permlane32_swap_b32 v{v}, v{v+1}")
        for i, v in enumerate(v8): A(f"v_add_f32 v{GG+i}, v{v}, v{v+1}")
        for i in range(8): A(f"v_cvt_pk_bf16_f32 v{GG+i}, v{GG+i}, v{GG+i}")
        for i in range(8): A(f"v_and_b32 v{GG+i}, 0xffff0000, v{GG+i}")
    A(f"s_mov_b32 s{t7}, {hex(f2u(-1.4426950408889634))}")
    for i in range(4): A(f"v_mul_f32 v{vals[i]}, s{t7}, v{GG+i}")
    for i in range(4): A(f"v_exp_f32 v{vals[i]}, v{vals[i]}")
    nop(1)
    for i in range(4): A(f"v_add_f32 v{vals[i]}, 1.0, v{vals[i]}")
    for i in range(4): A(f"v_rcp_f32 v{vals[i]}, v{vals[i]}")
    nop(1)
    for i in range(4): A(f"v_mul_f32 v{GG+i}, v{GG+i}, v{vals[i]}")
    for i in range(4): A(f"v_cvt_pk_bf16_f32 v{GG+i}, v{GG+i}, v{GG+i}")
    for i in range(4): A(f"v_and_b32 v{GG+i}, 0xffff0000, v{GG+i}")
    for i in range(4): A(f"v_mul_f32 v{GG+i}, v{GG+i}, v{UU+i}")
    A(f"v_and_b32 v{vT0}, 3, v0"); A(f"v_cmp_eq_u32 vcc, v{vT0}, v{vSLAB}")
    A(f"v_cvt_pk_bf16_f32 v{GG}, v{GG}, v{GG+1}"); A(f"v_cvt_pk_bf16_f32 v{GG+1}, v{GG+2}, v{GG+3}")
    A(f"v_cndmask_b32 v{AH}, v{AH}, v{GG}, vcc"); A(f"v_cndmask_b32 v{AH+1}, v{AH+1}, v{GG+1}, vcc")
    lab("L_noffn")
    A("s_barrier")
    stamp(6)
    SG, OG = 48, 52
    BW, BD, DF, DD, ACC, vW = 72, 88, 96, 112, 144, 148
    def st_load(): A(f"buffer_load_dwordx4 {R(SG,4)}, v{vSA}, {S4(rWS)}, s{sSTo} offen{HOF}")
    def o_loads(p):
        A(f"buffer_load_dwordx4 {R(OG+8*p,4)}, v{vA0}, {S4(rWS)}, s{sOPo} offen offset:{2048*p}{HOF}")
        A(f"buffer_load_dwordx4 {R(OG+8*p+4,4)}, v{vA0}, {S4(rWS)}, s{sOPo} offen offset:{2048*p+1024}{HOF}")
    st_load()
    for j in range(4): A(f"buffer_load_dwordx2 {R(TD+2*j,2)}, v{vDA}, {S4(rB)}, s{sDNo} offen offset:{1024*j} nt")
    for j in range(8):
        A(f"buffer_load_dwordx2 {R(TW+2*j,2)}, v{vWA}, {S4(rA)}, s{sWOo} offen offset:{1024*(j&1)} nt")
        if j & 1 and j < 7: A(f"s_add_u32 s{sWOo}, s{sWOo}, 8192")
    srd(rB, sOUT, 4096)
    A("s_barrier")
    stamp(7)
    if o['oearly']: A(f"s_sleep {o['oearly']}")
    o_loads(0); o_loads(1)
    nx = 4
    A(f"s_mov_b32 s{sSPIN}, 0")
    A(f"s_waitcnt vmcnt({12+nx})")
    lab("L_stpoll")
    A(f"v_bitop3_b32 v{SG+1}, v{SG+1}, v{SG+3}, s{sTAG} bitop3:0x7e")
    A(f"v_cmp_ne_u32 vcc, 0, v{SG+1}")
    A("s_cbranch_vccz L_stok")
    A(f"s_add_u32 s{sSPIN}, s{sSPIN}, 1"); A(f"s_cmp_lt_u32 s{sSPIN}, {SPIN_MAX}"); A("s_cbranch_scc0 L_stok")
    st_load()
    A("s_waitcnt vmcnt(0)")
    A("s_branch L_stpoll")
    lab("L_stok")
    stamp(14)
    A(f"s_mov_b32 s{t7}, {LOG2E}")
    A(f"v_mov_b32 v{SG+1}, v{SG}")
    dpp_op("v_max_f32", SG+1, "quad_perm:[1,0,3,2]"); dpp_op("v_max_f32", SG+1, "quad_perm:[2,3,0,1]"); dpp_op("v_max_f32", SG+1, "row_ror:4")
    A(f"v_sub_f32 v{SG}, v{SG}, v{SG+1}"); A(f"v_mul_f32 v{SG}, s{t7}, v{SG}"); A(f"v_exp_f32 v{SG}, v{SG}"); nop(1)
    A(f"v_mul_f32 v{SG+2}, v{SG}, v{SG+2}")
    dpp_op("v_add_f32", SG+2, "quad_perm:[1,0,3,2]"); dpp_op("v_add_f32", SG+2, "quad_perm:[2,3,0,1]"); dpp_op("v_add_f32", SG+2, "row_ror:4")
    A(f"v_rcp_f32 v{SG+2}, v{SG+2}"); nop(1)
    A(f"v_mul_f32 v{vW}, v{SG}, v{SG+2}")
    A(f"s_waitcnt vmcnt({8+nx})")
    for e in range(4):
        for i in range(2):
            A(f"v_perm_b32 v{BD+2*e+i}, v{TD+2*(2*i+1)+(e>>1)}, v{TD+2*(2*i)+(e>>1)}, s{sHI if e&1 else sLO}")
    nop(1)
    for e in range(4): A(f"v_mfma_f32_16x16x16_bf16 {R(DF+4*e,4)}, {R(AH,2)}, {R(BD+2*e,2)}, 0")
    nop(7)
    for e in range(4): A(f"v_add_f32 v{ACC+e}, v{DF+4*e}, v{DF+4*e+1}")
    for e in range(4): A(f"v_add_f32 v{DF+4*e+2}, v{DF+4*e+2}, v{DF+4*e+3}")
    for e in range(4): A(f"v_add_f32 v{ACC+e}, v{ACC+e}, v{DF+4*e+2}")
    A(f"s_waitcnt vmcnt({nx})")
    stamp(13)
    order = [0, 2, 1, 3]
    for e in range(4):
        for i in range(4):
            pr = order[i]
            A(f"v_perm_b32 v{BW+4*e+i}, v{TW+2*(2*pr+1)+(e>>1)}, v{TW+2*(2*pr)+(e>>1)}, s{sHI if e&1 else sLO}")
    C("O partial gather (retry only the lanes still missing)")
    A(f"s_mov_b32 s{sSPIN}, 0")
    lab("L_opoll")
    A("s_waitcnt vmcnt(0)")
    for p, mk in ((0, mA), (1, mB)):
        A(f"v_bitop3_b32 v{vT0}, v{OG+8*p+1}, v{OG+8*p+3}, s{sTAG} bitop3:0x7e")
        A(f"v_bitop3_b32 v{vT1}, v{OG+8*p+5}, v{OG+8*p+7}, s{sTAG} bitop3:0x7e")
        A(f"v_or_b32 v{vT0}, v{vT0}, v{vT1}")
        A(f"v_cmp_ne_u32 {S2(mk)}, 0, v{vT0}")
    A(f"s_or_b64 {S2(mC)}, {S2(mA)}, {S2(mB)}")
    A("s_cbranch_scc0 L_ook")
    A(f"s_add_u32 s{sSPIN}, s{sSPIN}, 1"); A(f"s_cmp_lt_u32 s{sSPIN}, {SPIN_MAX}"); A("s_cbranch_scc0 L_ook")
    A(f"s_mov_b64 exec, {S2(mA)}"); A("s_cbranch_execz L_o1")
    o_loads(0)
    lab("L_o1")
    A(f"s_mov_b64 exec, {S2(mB)}"); A("s_cbranch_execz L_o2")
    o_loads(1)
    lab("L_o2")
    A("s_mov_b64 exec, -1")
    A("s_branch L_opoll")
    lab("L_ook")
    stamp(8)
    for p in range(2):
        A(f"v_mov_b32 v{OG+8*p+1}, v{OG+8*p+4}"); A(f"v_mov_b32 v{OG+8*p+3}, v{OG+8*p+6}")
    nop(1)
    for p in range(2):
        for e in range(4):
            A(f"v_mfma_f32_16x16x32_bf16 {R(DD+16*p+4*e,4)}, {R(OG+8*p,4)}, {R(BW+4*e,4)}, 0")
    nop(1)
    for p in range(2):
        for r in range(4):
            for e in range(4):
                A(f"v_fmac_f32_dpp v{ACC+e}, v{vW}, v{DD+16*p+4*e+r} row_newbcast:{4*p+r} {DPP}")
    A(f"ds_write_b128 v{vXW}, {R(ACC,4)}")
    A("s_waitcnt lgkmcnt(0)")
    A("s_barrier")
    def xsum_store(vaddr_l, base):
        for k in range(4): A(f"ds_read_b64 {R(base+2*k,2)}, v{vaddr_l} offset:{1024*k}")
        A(f"v_mov_b32 v{base+9}, s{sTAG}"); A(f"v_mov_b32 v{base+11}, s{sTAG}")
        A("s_waitcnt lgkmcnt(2)"); A(f"v_pk_add_f32 {R(base,2)}, {R(base,2)}, {R(base+2,2)}")
        A("s_waitcnt lgkmcnt(0)"); A(f"v_pk_add_f32 {R(base+4,2)}, {R(base+4,2)}, {R(base+6,2)}")
        A(f"v_add_f32 v{base+8}, v{base}, v{base+4}"); A(f"v_add_f32 v{base+10}, v{base+1}, v{base+5}")
    A(f"s_cmp_ge_u32 s{sWID}, 2"); A("s_cbranch_scc1 L_final")
    xsum_store(vXR2, 8)
    A(f"buffer_store_dwordx4 v[16:19], v{vHA}, {S4(rWS)}, s{sH2o} offen sc1")
    stamp(9)
    A("s_branch L_svcend" if stamps else "s_endpgm")
    lab("L_final")
    A(f"s_cmp_eq_u32 s{sWID}, 2"); A("s_cbranch_scc0 L_svcend")
    C("final reduction over heads for 8 outputs")
    sRo = t0
    A(f"s_lshl_b32 s{sRo}, s{sRHO}, 11"); A(f"s_add_u32 s{sRo}, s{sRo}, {WS_H2}")
    A(f"s_lshl_b32 s{t1}, s{sRHO}, 4")
    A(f"v_lshlrev_b32 v20, 16, v{vXR}"); A(f"v_and_b32 v21, 0xffff0000, v{vXR}")
    A(f"s_mov_b32 s{sSPIN}, 0")
    if o['delay_h2']: A(f"s_sleep {o['delay_h2']}")
    lab("L_hpoll")
    A(f"buffer_load_dwordx4 v[8:11], v{vA0}, {S4(rWS)}, s{sRo} offen sc1")
    A(f"buffer_load_dwordx4 v[12:15], v{vA0}, {S4(rWS)}, s{sRo} offen offset:1024 sc1")
    A(f"s_add_u32 s{sSPIN}, s{sSPIN}, 1")
    A("s_waitcnt vmcnt(0)")
    A(f"v_bitop3_b32 v9, v9, v11, s{sTAG} bitop3:0x7e"); A(f"v_bitop3_b32 v13, v13, v15, s{sTAG} bitop3:0x7e")
    A("v_add_f32 v8, v8, v12"); A("v_add_f32 v10, v10, v14")
    A("v_or_b32 v9, v9, v13")
    A("v_cmp_ne_u32 vcc, 0, v9")
    A("s_cbranch_vccz L_hok")
    if o['sleep_h2']: A(f"s_sleep {o['sleep_h2']}")
    A(f"s_cmp_lt_u32 s{sSPIN}, {SPIN_MAX}"); A("s_cbranch_scc1 L_hpoll")
    lab("L_hok")
    for ctl in ("row_ror:4", "row_ror:8"):
        A(f"v_add_f32_dpp v8, v8, v8 {ctl} {DPP}"); A(f"v_add_f32_dpp v10, v10, v10 {ctl} {DPP}"); nop(1)
    for sw in ("v_permlane16_swap_b32", "v_permlane32_swap_b32"):
        A("v_mov_b32 v9, v8"); A("v_mov_b32 v11, v10"); nop(1)
        A(f"{sw} v8, v9"); A(f"{sw} v10, v11"); nop(1)
        A("v_add_f32 v8, v8, v9"); A("v_add_f32 v10, v10, v11")
    A("v_add_f32 v8, v8, v20"); A("v_add_f32 v10, v10, v21")
    A("s_mov_b64 exec, 15")
    A("v_cvt_pk_bf16_f32 v8, v8, v10")
    A(f"buffer_store_dword v8, v{vXR+1}, {S4(rB)}, s{t1} offen")
    A("s_cmp_eq_u32 s2, 0"); A("s_cbranch_scc0 L_svcend")
    C("advance the hand-off epoch (every workgroup has read it by now)")
    A("s_mov_b64 exec, 1")
    A(f"s_add_u32 s{t1}, s{sEP}, 1")
    A(f"v_mov_b32 v9, s{t1}")
    A(f"buffer_store_dword v9, v{vZ}, {S4(rWS)}, 0 offen offset:{WS_EPOCH}")
    lab("L_svcend")
    if stamps:
        stamp(10)
        stamps_to_lds([(10, 10)])
        A(f"s_cmp_eq_u32 s{sWID}, 0"); A("s_cbranch_scc0 L_st1")
        stamps_to_lds([(i, i) for i in range(10)] + [(11, 18), (12, 19), (13, 20), (14, 21)])
        lab("L_st1")
        A("s_barrier")
        A(f"s_cmp_eq_u32 s{sWID}, 0"); A("s_cbranch_scc0 L_end")
        A("s_sleep 40")
        A(f"s_add_u32 s{t2}, s{sWS}, 0x10000000"); A(f"s_addc_u32 s{t3}, s{sWS+1}, 0")
        A(f"v_lshlrev_b32 v6, 2, v0"); A(f"v_add_u32 v7, {L_S}, v6"); A("ds_read_b32 v8, v7")
        A(f"s_lshl_b32 s{t1}, s2, 8"); A(f"v_add_u32 v6, s{t1}, v6")
        A("s_waitcnt lgkmcnt(0)")
        A(f"global_store_dword v6, v8, s[{t2}:{t3}]")
    A("s_endpgm")

    L.append(".p2align 6")
    lab("L_att")
    C("---- attention waves (continued): V stream into registers, P.V")
    VV, PA, PT, XX, YY = 128, 64, 24, 8, 12
    stamp(1)
    srd(rB, sV, 0x8000000)
    A("v_lshlrev_b32 v20, 4, v0")
    FS = 56
    vFA, vOW, vOR, vOS = 60, 61, 62, 63
    def setup0():
        A(f"s_mov_b32 s{sLO}, 0x05040100"); A(f"s_mov_b32 s{sHI}, 0x07060302")
        A(f"s_lshl_b32 s{t6}, s{sAW}, 2"); A(f"s_add_u32 s{t6}, s{t6}, {L_F}"); A(f"v_mov_b32 v21, s{t6}"); A("v_mov_b32 v22, 1")
    def setup1():
        srd(rWS, sWS, WS_END)
        A(f"v_and_b32 v4, 3, v{vN}"); A("v_mul_u32_u24 v4, 320, v4"); A(f"v_lshl_add_u32 v4, v{vSLAB}, 4, v4")
        A(f"s_mul_i32 s{t6}, s{sAW}, 1280"); A(f"s_add_u32 s{t6}, s{t6}, {L_P}"); A(f"v_add_u32 v4, s{t6}, v4")
        A(f"v_lshrrev_b32 v5, 2, v{vN}"); A(f"v_mov_b32 v6, {L_Z}")
        for g in range(4):
            A(f"v_cmp_eq_u32 vcc, {g}, v5"); nop(2); A(f"v_cndmask_b32 v{16+g}, v6, v4, vcc")
        A(f"v_mov_b32 v4, {L_MW}")
        A(f"s_lshl_b32 s{t6}, s{sAW}, 4"); A(f"s_add_u32 s{t6}, s{t6}, {L_MW}"); A(f"v_mov_b32 v5, s{t6}")
        A(f"v_lshlrev_b32 v{vFA}, 2, v{vN}"); A(f"v_add_u32 v{vFA}, {L_F}, v{vFA}")
    sHRs = t3
    def setup2():
        A(f"s_lshl_b32 s{t6}, s{sAW}, 11"); A(f"s_add_u32 s{t6}, s{t6}, {L_O}"); A(f"v_lshl_add_u32 v{vOW}, v0, 3, s{t6}")
        A(f"s_lshl_b32 s{t6}, s{sAW}, 9"); A(f"s_add_u32 s{t6}, s{t6}, {L_O}"); A(f"v_lshl_add_u32 v{vOR}, v0, 4, s{t6}")
        A(f"s_lshl2_add_u32 s{t5}, s{sHKV}, s{sAW}"); A(f"s_lshl_b32 s{t5}, s{t5}, 14")
        A(f"s_bfe_u32 s{t6}, s{sR}, 0x10002"); A(f"s_lshl_b32 s{t6}, s{t6}, 11"); A(f"s_add_u32 s{t5}, s{t5}, s{t6}")
        A(f"s_lshr_b32 s{t6}, s{sR}, 3"); A(f"s_lshl_b32 s{t6}, s{t6}, 6"); A(f"s_add_u32 s{t5}, s{t5}, s{t6}")
        A(f"s_and_b32 s{t6}, s{sR}, 3"); A(f"s_lshl_b32 s{t6}, s{t6}, 4"); A(f"s_add_u32 s{t5}, s{t5}, s{t6}"); A(f"s_add_u32 s{t5}, s{t5}, {WS_OP}")
        A(f"v_bfe_u32 v{vOS}, v0, 3, 2"); A(f"v_lshlrev_b32 v{vOS}, 12, v{vOS}"); A("v_and_b32 v7, 1, v0"); A(f"v_lshl_add_u32 v{vOS}, v7, 10, v{vOS}")
        A("v_bfe_u32 v7, v0, 1, 2"); A(f"v_lshl_add_u32 v{vOS}, v7, 8, v{vOS}")
        A("s_waitcnt lgkmcnt(0)")
        make_tag()
    def p_fetch():
        lds_spin("p", vFA, 7, "0x1e00")
        A(f"v_readlane_b32 s{sMODE}, v7, 4")
        for k in range(4): A(f"ds_read_b128 {R(PT+4*k,4)}, v4 offset:{16*k}")
        A(f"ds_read_b128 {R(FS,4)}, v5")
        for u in range(2):
            for g in range(4): A(f"ds_read_b128 {R(PA+16*u+4*g,4)}, v{16+g} offset:{64*u}")
        A(f"s_and_b32 s{sMODE}, s{sMODE}, 2")
    def p_fetch2():
        A(f"s_mov_b32 s{t7}, {LOG2E}")
        A("s_waitcnt lgkmcnt(0)")
        for u in range(2, 4):
            for g in range(4): A(f"ds_read_b128 {R(PA+16*u+4*g,4)}, v{16+g} offset:{64*u}")
        for h in range(4): A(f"v_max3_f32 v{PT+h}, v{PT+h}, v{PT+4+h}, v{PT+8+h}")
        for h in range(4): A(f"v_max_f32 v{PT+h}, v{PT+h}, v{PT+12+h}")
        for h in range(4): A(f"v_sub_f32 v{FS+h}, v{FS+h}, v{PT+h}")
        for h in range(4): A(f"v_mul_f32 v{FS+h}, s{t7}, v{FS+h}")
        for h in range(4): A(f"v_exp_f32 v{FS+h}, v{FS+h}")
    def perm1(u, e, i):
        A(f"v_perm_b32 v{PT+4*e+i}, v{VV+4*(8*u+2*i+1)+(e>>1)}, v{VV+4*(8*u+2*i)+(e>>1)}, s{sHI if e&1 else sLO}")
    def mf(u, e):
        acc = YY if e & 1 else XX
        first = (u == 0 and e < 2)
        A(f"v_mfma_f32_16x16x32_bf16 {R(acc,4)}, {R(PA+16*u+4*(e>>1),4)}, {R(PT+4*e,4)}, {'0' if first else R(acc,4)}")
    def pv_chunk(u, e0):
        for i in range(4): perm1(u, e0, i)
        for e in range(e0+1, e0+4):
            for i in range(4): perm1(u, e, i)
            mf(u, e-1)
        nop(2); mf(u, e0+3)
    pc = o['pchk']
    chunks = {pc+2: [(0, 0)], pc+3: [(0, 4)], pc+4: [(1, 0)], pc+5: [(1, 4)], 31: [(2, 0), (2, 4)]}
    for i in range(32):
        if i % 4 == 0:
            A(f"s_and_b32 s{t4}, s{sBLK}, 0x1ffff"); A(f"s_add_u32 s{t4}, s{t4}, s{sBASE}"); A(f"s_add_u32 s{sBLK}, s{sBLK}, 16384")
        if o['wv'] and i < o['vfree']: A(f"s_waitcnt vmcnt({o['wv']-1})")
        A(f"buffer_load_dwordx4 {R(VV+4*i,4)}, v20, {S4(rB)}, s{t4} offen offset:{1024*(i&3)} nt")
        if i == 1: setup0()
        if i + 1 == o['kwait']:
            A(f"s_waitcnt vmcnt({o['kwait']})"); A("ds_write_b32 v21, v22")
            stamp(2)
        if i == 31:
            stamp(3)
            A("s_barrier")
        if i == 12: setup1()
        if i == 13: setup2()
        if i == pc and not o.get('pvend'): p_fetch()
        if i == pc + 1 and not o.get('pvend'): p_fetch2()
        if o.get('pvend') and i == 31:
            p_fetch(); p_fetch2()
            for u in range(3):
                A(f"s_waitcnt vmcnt({24-8*u}) lgkmcnt(0)"); pv_chunk(u, 0); pv_chunk(u, 4)
        for u, e0 in ([] if o.get('pvend') else chunks.get(i, [])):
            if e0 == 0: A(f"s_waitcnt vmcnt({i-(8*u+7)}) lgkmcnt(0)")
            pv_chunk(u, e0)
    for i in range(3):
        A(f"s_waitcnt vmcnt({6-2*i})")
        for e in range(8): perm1(3, e, i)
    A("s_waitcnt vmcnt(0)")
    stamp(7)
    for e in range(3): perm1(3, e, 3)
    for e in range(8):
        mf(3, e)
        if e + 3 < 8: perm1(3, e+3, 3)
    stamp(4)
    nop(7)
    for h in range(4): A(f"v_mul_f32 v{PT+2*h}, v{XX+h}, v{FS+h}")
    for h in range(4): A(f"v_mul_f32 v{PT+2*h+1}, v{YY+h}, v{FS+h}")
    for h in range(4): A(f"ds_write_b64 v{vOW}, {R(PT+2*h,2)} offset:{512*h}")
    A("s_waitcnt lgkmcnt(0)")
    A("s_barrier")
    A("s_mov_b32 exec_hi, 0")
    for k in range(4): A(f"ds_read_b128 {R(PT+8+4*k,4)}, v{vOR} offset:{2048*k}")
    A(f"v_mov_b32 v{PT+1}, s{sTAG}"); A(f"v_mov_b32 v{PT+3}, s{sTAG}")
    A("s_waitcnt lgkmcnt(2)")
    A(f"v_pk_add_f32 {R(PT+8,2)}, {R(PT+8,2)}, {R(PT+12,2)}"); A(f"v_pk_add_f32 {R(PT+10,2)}, {R(PT+10,2)}, {R(PT+14,2)}")
    A("s_waitcnt lgkmcnt(0)")
    A(f"v_pk_add_f32 {R(PT+16,2)}, {R(PT+16,2)}, {R(PT+20,2)}"); A(f"v_pk_add_f32 {R(PT+18,2)}, {R(PT+18,2)}, {R(PT+22,2)}")
    A(f"v_pk_add_f32 {R(PT+8,2)}, {R(PT+8,2)}, {R(PT+16,2)}"); A(f"v_pk_add_f32 {R(PT+10,2)}, {R(PT+10,2)}, {R(PT+18,2)}")
    A(f"v_cvt_pk_bf16_f32 v{PT}, v{PT+8}, v{PT+9}"); A(f"v_cvt_pk_bf16_f32 v{PT+2}, v{PT+10}, v{PT+11}")
    store_mode("o", f"buffer_store_dwordx4 {R(PT,4)}, v{vOS}, {S4(rWS)}, s{t5} offen")
    if stamps:
        stamp(5)
        A(f"s_cmp_eq_u32 s{sWID}, 4"); A("s_cbranch_scc0 L_ns4")
        stamps_to_lds([(i, 10+i) for i in range(1, 8)])
        lab("L_ns4")
    lab("L_end")
    A("s_endpgm")
    lab("L_codeend")
    L.append('.section .rodata,"a"'); L.append(".p2align 6"); L.append(f".amdhsa_kernel {NAME}_kernel")
    for s in ("next_free_vgpr 256", "next_free_sgpr 100", "accum_offset 256", "group_segment_fixed_size 0", "kernarg_size 96",
              "user_sgpr_count 2", "user_sgpr_kernarg_segment_ptr 1", "system_sgpr_workgroup_id_x 1",
              "float_denorm_mode_32 3", "float_denorm_mode_16_64 3"):
        L.append("  .amdhsa_" + s)
    L.append(".end_amdhsa_kernel")
    return "\n".join(L) + "\n"

if __name__ == "__main__":
    import json
    out = sys.argv[1]
    st = int(sys.argv[2]) if len(sys.argv) > 2 else 0
    opts = json.loads(sys.argv[3]) if len(sys.argv) > 3 else None
    open(out, "w").write(gen(st, opts))
```
